```python
import torch

def _softmax(x, axis=-1):
    return torch.softmax(x, dim=axis)
def _gelu(x):
    return torch.nn.functional.gelu(x, approximate="tanh")
def _silu(x):
    return torch.nn.functional.silu(x)
def _sigmoid(x):
    return torch.sigmoid(x)
def _layernorm(x, axis=-1, eps=1e-5):
    m = x.mean(dim=axis, keepdim=True)
    v = x.var(dim=axis, keepdim=True, unbiased=False)
    return (x - m) / torch.sqrt(v + eps)
def _scatter_add(tgt, idx, src, axis=0):
    return tgt.clone().index_add_(axis, idx, src)
def _segment_sum(src, seg, n):
    out = torch.zeros((n,) + src.shape[1:], dtype=src.dtype)
    return out.index_add_(0, seg, src)
def _pad(x, pw):
    flat = tuple(v for pair in reversed(pw) for v in pair)
    return torch.nn.functional.pad(x, flat)

kernel_name = 'parallel_sum__sliding_block_cached__dense_activation_silu__decode'

def setup_inputs():

    _w = (lambda a: (lambda t: t.to(torch.bfloat16) if t.is_floating_point() else t)(torch.as_tensor(a)))
    def _A_setup():
        B, Sq, D = 8, 1, 512
        Hq, Hkv, Sk, Dh = 32, 8, 4096, 128
        assert Hq % Hkv == 0, (Hq, Hkv)
        return {
            "x": _w((lambda *s: torch.randn(*s, dtype=torch.bfloat16) * 0.05)(B, Sq, D)),
            "k_cache": _w((lambda *s: torch.randn(*s, dtype=torch.bfloat16) * 3.2)(B, Hkv, Sk, Dh)),
            "v_cache": _w((lambda *s: torch.randn(*s, dtype=torch.bfloat16) * 0.8)(B, Hkv, Sk, Dh)),
            "wq": _w((lambda *s: torch.randn(*s, dtype=torch.bfloat16) * 3.2)(D, Hq * Dh) * (D ** -0.5)),
            "wo": _w((lambda *s: torch.randn(*s, dtype=torch.bfloat16) * 0.8)(Hq * Dh, D) * ((Hq * Dh) ** -0.5)),
        }
    _A_in = _A_setup()

    def _B_setup():
        B, S, D, F = 8, 1, 512, 1792
        return {
            "x": _w((lambda *s: torch.randn(*s, dtype=torch.bfloat16) * 0.05)(B, S, D)),
            "w1": _w((lambda *s: torch.randn(*s, dtype=torch.bfloat16) * 3.2)(D, F) * (D ** -0.5)),
            "w2": _w((lambda *s: torch.randn(*s, dtype=torch.bfloat16) * 0.4)(F, D) * (F ** -0.5)),
        }
    _B_in = _B_setup()

    return {
        "A_x": _A_in["x"],
        "A_k_cache": _A_in["k_cache"],
        "A_v_cache": _A_in["v_cache"],
        "A_wq": _A_in["wq"],
        "A_wo": _A_in["wo"],
        "B_x": _B_in["x"],
        "B_w1": _B_in["w1"],
        "B_w2": _B_in["w2"],
    }

def reference(A_x, A_k_cache, A_v_cache, A_wq, A_wo, B_x, B_w1, B_w2):
    def _A_ref(x, k_cache, v_cache, wq, wo):
        B, Sq, D = x.shape
        Hq, Dh = 32, 128
        Hkv, Sk = k_cache.shape[1], k_cache.shape[2]
        W = min(4096, max(256, Sk // 4))
        rep = Hq // Hkv
        q = (lambda x, *d: x.permute(*d))((x @ wq).reshape(B, Sq, Hq, Dh), 0, 2, 1, 3)
        k = (lambda x, n, axis: torch.repeat_interleave(x, n, dim=axis))(k_cache[:, :, Sk - W:, :], rep, axis=1)
        v = (lambda x, n, axis: torch.repeat_interleave(x, n, dim=axis))(v_cache[:, :, Sk - W:, :], rep, axis=1)
        scores = torch.einsum("bhqd,bhkd->bhqk", q, k) * (Dh ** -0.5)
        p = _softmax(scores, axis=-1)
        o = torch.einsum("bhqk,bhkd->bhqd", p, v)
        return (lambda x, *d: x.permute(*d))(o, 0, 2, 1, 3).reshape(B, Sq, Hq * Dh) @ wo

    def _B_ref(x, w1, w2):
        h = torch.einsum("bsd,df->bsf", x, w1)
        h = _silu(h)
        out = torch.einsum("bsf,fd->bsd", h, w2)
        return out

    x = A_x
    xn = _layernorm(x, axis=-1)
    return x + _A_ref(xn, A_k_cache, A_v_cache, A_wq, A_wo) + _B_ref(xn, B_w1, B_w2)
```

```python
import sys
NAME = "parallel_sum__sliding_block_cached__dense_activation_silu__decode"
PROFILE = int(sys.argv[2]) if len(sys.argv) > 2 else 0
OUT = sys.argv[1] if len(sys.argv) > 1 else f"cdna_kernels/{NAME}.s"

L = []
def e(s): L.append("    " + s)
def lab(s): L.append(s + ":")
def c(s): L.append("    ; " + s)
def vr(a, n): return f"v[{a}:{a+n-1}]"

V_L, W_L = 0, 65536
WQ_O, W1_O, WO_O, W2_O = 0, 16384, 24576, 40960
XN_L, XN_S = 114688, 1056
QL_L, QL_S = 123136, 320
PL_L, PL_S = 124416, 576
OL_L, OL_S = 126720, 288
HL_L, HL_S = 129024, 160
MX_L = 130304
CNT_L = 130368
LDS_BYTES = 130560
EP_G = 0
SG_G = 0x1000
QG_G = 0x8000
HG_G = QG_G + 0x80000
OG_G = HG_G + 0x70000
FG_G = OG_G + 0x80000
TS_G = 0x400000
assert FG_G + 0x80000 <= 0x200000
sX, sK, sV, sWQ, sWO, sW1, sW2, sOUT, sWS = "s[4:5]", "s[6:7]", "s[8:9]", "s[10:11]", "s[12:13]", "s[16:17]", "s[18:19]", "s[20:21]", "s[24:25]"
sKVH, sR, sHI, sLO, sW, sEP, sTAG, sHG, sRB, sT0, sMSK, sSPIN = "s26", "s27", "s28", "s29", "s30", "s31", "s32", "s33", "s34", "s35", "s36", "s37"
sT1, sT2, sT3, sT4, sT5 = "s42", "s43", "s44", "s45", "s46"
SPIN_MAX = 1 << 18
LOG2E = "0x3fb8aa3b"
vTS = 200
def ts(k):
    if PROFILE:
        e("s_memrealtime s[40:41]")
        e("s_waitcnt lgkmcnt(0)")
        e(f"v_writelane_b32 v{vTS}, s40, {k}")
def ts_flush():
    if PROFILE:
        e("s_mov_b64 exec, 0xffff")
        e(f"s_lshl_b32 {sT0}, s2, 3")
        e(f"s_add_u32 {sT0}, {sT0}, {sW}")
        e(f"s_lshl_b32 {sT0}, {sT0}, 6")
        e(f"s_add_u32 {sT0}, {sT0}, {TS_G}")
        e(f"v_lshl_add_u32 v{vTS+1}, v0, 2, {sT0}")
        e(f"global_store_dword v{vTS+1}, v{vTS}, {sWS}")

def tag4(r):
    for k in range(4):
        e(f"v_and_or_b32 v{r+k}, v{r+k}, {sMSK}, v{vTAG}")
def check(regs, tmp, retry):
    for r in regs: e(f"v_xor_b32 v{r}, {sTAG}, v{r}")
    e(f"v_or3_b32 v{tmp}, v{regs[0]}, v{regs[1]}, v{regs[2]}")
    rest = regs[3:]
    while len(rest) >= 2:
        e(f"v_or3_b32 v{tmp}, v{tmp}, v{rest[0]}, v{rest[1]}"); rest = rest[2:]
    if rest: e(f"v_or_b32 v{tmp}, v{tmp}, v{rest[0]}")
    e(f"v_and_b32 v{tmp}, 0xff, v{tmp}")
    e(f"v_cmp_ne_u32 vcc, 0, v{tmp}")
    e(f"s_cbranch_vccnz {retry}")

vROW, vSRC, vTAG, vWT = 4, 5, 6, 7

hdr = open(f"cdna_kernels/{NAME}.s.ref").read().split("; Override launch geometry")[0]
L.append(hdr.rstrip("\n"))
L.append(f"; @launch grid=(256,1,1) block=(512,1,1) lds={LDS_BYTES}")
L.append('.amdgcn_target "amdgcn-amd-amdhsa--gfx950"')
L.append(".text")
L.append(f".globl {NAME}_kernel")
L.append(".p2align 8")
L.append(f".type {NAME}_kernel,@function")
lab(f"{NAME}_kernel")
e("s_cmp_ge_u32 s2, 256")
e("s_cbranch_scc1 L_end")
e("s_load_dwordx16 s[4:19], s[0:1], 0")
e("s_load_dwordx4 s[20:23], s[0:1], 64")
e("s_load_dwordx2 s[24:25], s[0:1], 80")
e("s_getpc_b64 s[38:39]")
e("v_lshrrev_b32 v1, 6, v0")
e("v_and_b32 v0, 63, v0")
e(f"s_and_b32 {sKVH}, s2, 7")
e(f"v_readfirstlane_b32 {sW}, v1")
e(f"s_lshr_b32 {sR}, s2, 3")
e(f"s_lshr_b32 {sHI}, s2, 5")
e(f"s_and_b32 {sLO}, {sR}, 3")
e(f"s_lshl_b32 {sHG}, {sKVH}, 2")
e(f"s_add_u32 {sHG}, {sHG}, {sLO}")
e(f"s_min_u32 {sRB}, {sHG}, 27")
if PROFILE: e(f"v_mov_b32 v{vTS}, 0")
e("v_mov_b32 v15, 0")
e("v_mov_b32 v197, 0")
c("weight-DMA lane parts: row = l>>3, source byte = ((l&7) ^ ((l>>3)&2)) * 16")
e(f"v_lshrrev_b32 v{vROW}, 3, v0")
e(f"v_and_b32 v{vSRC}, 7, v0")
e(f"v_and_b32 v1, 2, v{vROW}")
e(f"v_xor_b32 v{vSRC}, v{vSRC}, v1")
e(f"v_lshlrev_b32 v{vSRC}, 4, v{vSRC}")
e(f"s_cmp_ge_u32 {sW}, 4")
e("s_cbranch_scc1 L_kv")

e("s_setprio 3")
e(f"v_mov_b32 v22, {CNT_L}")
e("v_mov_b32 v23, 0")
e("ds_write_b32 v22, v23")
e("v_lshlrev_b32 v2, 4, v0")
e(f"s_lshl_b32 {sT0}, {sW}, 11")
e(f"v_add_u32 v3, {sT0}, v2")
e(f"s_lshl_b32 {sT0}, {sLO}, 7")
e(f"s_lshl_b32 {sT1}, {sW}, 5")
e(f"s_add_u32 {sT0}, {sT0}, {sT1}")
e(f"s_lshl_b32 {sT0}, {sT0}, 13")
e(f"s_lshl_b32 {sT1}, {sKVH}, 10")
e(f"s_add_u32 {sT0}, {sT0}, {sT1}")
e(f"s_lshl_b32 {sT1}, {sHI}, 7")
e(f"s_add_u32 {sT0}, {sT0}, {sT1}")
e(f"v_lshl_add_u32 v16, v{vROW}, 13, v{vSRC}")
e(f"v_add_u32 v16, {sT0}, v16")
e("v_add_u32 v17, 0x10000, v16")
e("v_xor_b32 v17, 64, v17")
e(f"s_lshl_b32 {sT0}, {sHI}, 6")
e(f"s_lshl_b32 {sT1}, {sW}, 4")
e(f"s_add_u32 {sT0}, {sT0}, {sT1}")
e(f"s_mul_i32 {sT0}, {sT0}, 3584")
e(f"s_lshl_b32 {sT1}, {sRB}, 7")
e(f"s_add_u32 {sT0}, {sT0}, {sT1}")
e(f"v_mul_u32_u24 v18, 3584, v{vROW}")
e(f"v_add3_u32 v18, v18, v{vSRC}, {sT0}")
e("v_add_u32 v19, 28672, v18")
e("v_xor_b32 v19, 64, v19")
e(f"s_lshl_b32 {sT2}, {sW}, 12")
e(f"s_add_u32 {sT2}, {sT2}, {W_L + WQ_O}")
e(f"s_lshl_b32 {sT3}, {sW}, 11")
e(f"s_add_u32 {sT3}, {sT3}, {W_L + W1_O}")
e(f"s_mov_b32 m0, {sT2}")
e("s_waitcnt lgkmcnt(0)")
ts(0)
e(f"global_load_dwordx4 v[8:11], v3, {sX} nt")
e(f"global_load_dwordx4 v[12:15], v3, {sX} offset:1024 nt")
e(f"global_load_lds_dwordx4 v16, {sWQ} nt")
e("s_add_u32 m0, m0, 1024")
e("v_add_u32 v16, 0x20000, v16")
e(f"global_load_lds_dwordx4 v17, {sWQ} nt")
e("s_add_u32 m0, m0, 1024")
e("v_add_u32 v17, 0x20000, v17")
e(f"global_load_lds_dwordx4 v16, {sWQ} nt")
e("s_add_u32 m0, m0, 1024")
e("s_nop 0")
e(f"global_load_lds_dwordx4 v17, {sWQ} nt")
e(f"s_mov_b32 m0, {sT3}")
e("s_nop 0")
e(f"global_load_lds_dwordx4 v18, {sW1} nt")
e("s_add_u32 m0, m0, 1024")
e("s_nop 0")
e(f"global_load_lds_dwordx4 v19, {sW1} nt")
c("bring this kernel's code into L2 (wave s covers 2 KB), reducer inputs, LDS counter")
e("v_lshlrev_b32 v1, 5, v0")
e(f"s_lshl_b32 {sT0}, {sW}, 11")
e(f"v_add_u32 v1, {sT0}, v1")
e("global_load_dword v20, v1, s[38:39]")
c("reducer column: ctg*16 + (l&3)*4 + (l>>5)*2 + ((l>>4)&1); element = b*512 + col")
vRX, vRO = 196, 197
e("v_and_b32 v1, 3, v0")
e("v_lshrrev_b32 v21, 4, v0")
e("v_lshl_add_u32 v1, v1, 2, v21")
e(f"s_lshl_b32 {sT0}, {sHI}, 9")
e(f"s_lshl_b32 {sT1}, {sHG}, 4")
e(f"s_add_u32 {sT0}, {sT0}, {sT1}")
e(f"v_add_lshl_u32 v{vRO}, v1, {sT0}, 1")
e(f"global_load_ushort v{vRX}, v{vRO}, {sX}")
e(f"global_load_ushort v20, v{vRO}, {sOUT}")
e("s_barrier")
ts(1)
e(f"s_load_dword {sEP}, {sWS}, {EP_G}")
c("weight transpose-read address")
def wt_addr():
    e("v_lshrrev_b32 v1, 4, v0")
    e("v_bfe_u32 v2, v0, 2, 2")
    e("v_lshl_add_u32 v1, v1, 3, v2")
    e("v_bfe_u32 v2, v0, 3, 2")
    e(f"v_xor_b32 v2, {sW}, v2")
    e("v_lshlrev_b32 v2, 5, v2")
    e("v_lshl_add_u32 v1, v1, 7, v2")
    e("v_and_b32 v2, 3, v0")
    e("v_lshl_add_u32 v1, v2, 3, v1")
    e(f"v_add_u32 v{vWT}, {W_L}, v1")
wt_addr()
A, B = 24, 32
e("s_waitcnt vmcnt(9)")
ts(2)
for (src, dst) in ((8, A), (12, B)):
    for k in range(4):
        e(f"v_lshlrev_b32 v{dst+2*k}, 16, v{src+k}")
        e(f"v_and_b32 v{dst+2*k+1}, 0xffff0000, v{src+k}")
ra, rb = 40, 41
def wave_sum():
    for m in ("quad_perm:[1,0,3,2] row_mask:0xf bank_mask:0xf", "quad_perm:[2,3,0,1] row_mask:0xf bank_mask:0xf",
              "row_half_mirror row_mask:0xf bank_mask:0xf", "row_mirror row_mask:0xf bank_mask:0xf",
              "row_bcast:15 row_mask:0xa bank_mask:0xf", "row_bcast:31 row_mask:0xc bank_mask:0xf"):
        e("s_nop 0")
        e(f"v_add_f32_dpp v{ra}, v{ra}, v{ra} {m}")
        e(f"v_add_f32_dpp v{rb}, v{rb}, v{rb} {m}")
    e(f"v_mul_f32 v{ra}, 0x3b000000, v{ra}")
    e(f"v_mul_f32 v{rb}, 0x3b000000, v{rb}")
for (d, r, t) in ((A, ra, 42), (B, rb, 44)):
    e(f"v_add_f32 v{r}, v{d}, v{d+1}")
    e(f"v_add_f32 v{t}, v{d+2}, v{d+3}")
    e(f"v_add_f32 v{t+1}, v{d+4}, v{d+5}")
    e(f"v_add_f32 v{r}, v{r}, v{t}")
    e(f"v_add_f32 v{t}, v{d+6}, v{d+7}")
    e(f"v_add_f32 v{t}, v{t}, v{t+1}")
e(f"v_add_f32 v{ra}, v{ra}, v42")
e(f"v_add_f32 v{rb}, v{rb}, v44")
wave_sum()
e(f"v_cvt_pk_bf16_f32 v46, v{ra}, v{rb}")
e(f"v_readlane_b32 {sT0}, v{ra}, 63")
e(f"v_readlane_b32 {sT1}, v{rb}, 63")
e(f"v_readlane_b32 {sT2}, v46, 63")
e("s_nop 1")
for (d, r, sm) in ((A, ra, sT0), (B, rb, sT1)):
    for k in range(8):
        e(f"v_subrev_f32 v{48+k}, {sm}, v{d+k}")
    e(f"v_mul_f32 v{r}, v48, v48")
    for k in range(1, 8):
        e(f"v_fmac_f32 v{r}, v{48+k}, v{48+k}")
e(f"s_and_b32 {sT3}, {sT2}, 0xffff0000")
e(f"s_lshl_b32 {sT2}, {sT2}, 16")
wave_sum()
def round2(a, b, t):
    e(f"v_cvt_pk_bf16_f32 v{t}, v{a}, v{b}")
    e(f"v_lshlrev_b32 v{a}, 16, v{t}")
    e(f"v_and_b32 v{b}, 0xffff0000, v{t}")
round2(ra, rb, 46)
e(f"v_add_f32 v{ra}, 0x3727c5ac, v{ra}")
e(f"v_add_f32 v{rb}, 0x3727c5ac, v{rb}")
round2(ra, rb, 46)
e(f"v_sqrt_f32 v{ra}, v{ra}")
e(f"v_sqrt_f32 v{rb}, v{rb}")
e("s_nop 0")
round2(ra, rb, 46)
e(f"v_rcp_f32 v42, v{ra}")
e(f"v_rcp_f32 v43, v{rb}")
e(f"v_readlane_b32 {sT0}, v{ra}, 63")
e(f"v_readlane_b32 {sT1}, v{rb}, 63")
e(f"v_readlane_b32 {sT4}, v42, 63")
e(f"v_readlane_b32 {sT5}, v43, 63")
c("xn = bf16(bf16(x - mean) / sd)")
for (d, sm) in ((A, sT2), (B, sT3)):
    for k in range(8):
        e(f"v_subrev_f32 v{d+k}, {sm}, v{d+k}")
    for k in range(4):
        round2(d+2*k, d+2*k+1, 46 + (k & 1))
for (d, ssd, sri, o) in ((A, sT0, sT4, 8), (B, sT1, sT5, 12)):
    for k in range(8):
        e(f"v_mul_f32 v{48+k}, {sri}, v{d+k}")
    for k in range(8):
        e(f"v_fma_f32 v{d+k}, -v{48+k}, {ssd}, v{d+k}")
    for k in range(8):
        e(f"v_fma_f32 v{48+k}, v{d+k}, {sri}, v{48+k}")
    for k in range(4):
        e(f"v_cvt_pk_bf16_f32 v{o+k}, v{48+2*k}, v{48+2*k+1}")
e(f"s_mul_i32 {sT0}, {sW}, {2*XN_S}")
e(f"s_add_u32 {sT0}, {sT0}, {XN_L}")
e(f"v_lshl_add_u32 v1, v0, 4, {sT0}")
e("ds_write_b128 v1, v[8:11]")
e(f"ds_write_b128 v1, v[12:15] offset:{XN_S}")
c("xn fragment address")
e("v_and_b32 v1, 7, v0")
e(f"v_mul_u32_u24 v1, {XN_S}, v1")
e("v_lshrrev_b32 v2, 4, v0")
e("v_lshl_add_u32 v1, v2, 4, v1")
e(f"s_lshl_b32 {sT0}, {sLO}, 8")
e(f"s_add_u32 {sT0}, {sT0}, {XN_L}")
e(f"s_lshl_b32 {sT1}, {sHI}, 7")
e(f"s_add_u32 {sT1}, {sT1}, {XN_L}")
e(f"v_add_u32 v16, {sT0}, v1")
e(f"v_add_u32 v17, {sT1}, v1")
c("publish offsets: lane part (l&15)*bstride + s*64 + g*16")
e("v_and_b32 v1, 15, v0")
e(f"s_lshl_b32 {sT2}, {sW}, 6")
e(f"v_lshl_add_u32 v2, v2, 4, {sT2}")
e(f"s_lshl_b32 {sT0}, {sKVH}, 16")
e(f"s_lshl_b32 {sT1}, {sLO}, 11")
e(f"s_add_u32 {sT0}, {sT0}, {sT1}")
e(f"s_lshl_b32 {sT1}, {sHI}, 8")
e(f"s_add_u32 {sT0}, {sT0}, {sT1}")
e(f"s_add_u32 {sT0}, {sT0}, {QG_G}")
e("v_lshl_add_u32 v18, v1, 13, v2")
e(f"v_add_u32 v18, {sT0}, v18")
e(f"s_lshl_b32 {sT0}, {sRB}, 14")
e(f"s_lshl_b32 {sT1}, {sHI}, 11")
e(f"s_add_u32 {sT0}, {sT0}, {sT1}")
e(f"s_add_u32 {sT0}, {sT0}, {HG_G}")
e("v_lshl_add_u32 v19, v1, 8, v2")
e(f"v_add_u32 v19, {sT0}, v19")
e("v_mov_b32 v23, 1")
ts(3)
e("s_waitcnt vmcnt(0) lgkmcnt(0)")
ts(4)
e("s_mov_b64 exec, 1")
e("ds_add_u32 v22, v23")
e("s_mov_b64 exec, -1")
e(f"s_add_u32 {sEP}, {sEP}, 1")
e(f"s_and_b32 {sTAG}, {sEP}, 0xff")
e(f"s_mov_b32 {sMSK}, 0xffffff00")
e(f"v_mov_b32 v{vTAG}, {sTAG}")
lab("L_cnt")
e("ds_read_b32 v23, v22")
e("s_waitcnt lgkmcnt(0)")
e(f"v_readfirstlane_b32 {sT0}, v23")
e(f"s_cmp_lt_u32 {sT0}, 4")
e("s_cbranch_scc1 L_cnt")
ts(5)
for s in range(4):
    e(f"ds_read_b64_tr_b16 {vr(24+4*s,2)}, v{vWT} offset:{WQ_O + s*4096}")
    e(f"ds_read_b64_tr_b16 {vr(26+4*s,2)}, v{vWT} offset:{WQ_O + s*4096 + 512}")
    e(f"ds_read_b128 {vr(40+4*s,4)}, v16 offset:{s*64}")
e("s_waitcnt lgkmcnt(6)")
e(f"v_mfma_f32_16x16x32_bf16 {vr(72,4)}, {vr(24,4)}, {vr(40,4)}, 0")
e(f"v_mfma_f32_16x16x32_bf16 {vr(72,4)}, {vr(28,4)}, {vr(44,4)}, {vr(72,4)}")
for s in range(2):
    e(f"ds_read_b64_tr_b16 {vr(56+4*s,2)}, v{vWT} offset:{W1_O + s*4096}")
    e(f"ds_read_b64_tr_b16 {vr(58+4*s,2)}, v{vWT} offset:{W1_O + s*4096 + 512}")
    e(f"ds_read_b128 {vr(64+4*s,4)}, v17 offset:{s*64}")
e("s_waitcnt lgkmcnt(6)")
e(f"v_mfma_f32_16x16x32_bf16 {vr(72,4)}, {vr(32,4)}, {vr(48,4)}, {vr(72,4)}")
e(f"v_mfma_f32_16x16x32_bf16 {vr(72,4)}, {vr(36,4)}, {vr(52,4)}, {vr(72,4)}")
e("s_waitcnt lgkmcnt(0)")
e(f"v_mfma_f32_16x16x32_bf16 {vr(76,4)}, {vr(56,4)}, {vr(64,4)}, 0")
e(f"v_mfma_f32_16x16x32_bf16 {vr(76,4)}, {vr(60,4)}, {vr(68,4)}, {vr(76,4)}")
e("s_mov_b32 exec_lo, 0x00ff00ff")
e("s_mov_b32 exec_hi, 0x00ff00ff")
e("s_nop 3")
tag4(72)
e(f"global_store_dwordx4 v18, {vr(72,4)}, {sWS} sc1")
e(f"s_cmp_eq_u32 {sKVH}, 7")
e("s_cbranch_scc1 L_nohpub")
tag4(76)
e(f"global_store_dwordx4 v19, {vr(76,4)}, {sWS} sc1")
lab("L_nohpub")
e("s_mov_b64 exec, -1")
ts(6)
e("v_lshrrev_b32 v1, 5, v0")
e("v_and_b32 v2, 31, v0")
e("v_lshlrev_b32 v3, 11, v1")
e("v_lshl_add_u32 v3, v2, 4, v3")
e(f"s_lshl_b32 {sT0}, {sKVH}, 16")
e(f"s_lshl_b32 {sT1}, {sHI}, 13")
e(f"s_add_u32 {sT0}, {sT0}, {sT1}")
e(f"s_lshl_b32 {sT1}, {sW}, 9")
e(f"s_add_u32 {sT0}, {sT0}, {sT1}")
e(f"s_add_u32 {sT0}, {sT0}, {QG_G + 4096}")
e(f"v_add_u32 v16, {sT0}, v3")
e(f"s_lshl_b32 {sT0}, {sRB}, 14")
e(f"s_add_u32 {sT0}, {sT0}, {sT1}")
e(f"s_add_u32 {sT0}, {sT0}, {HG_G + 4096}")
e(f"v_add_u32 v17, {sT0}, v3")
e("v_add_u32 v18, 0x2000, v17")
e("v_lshlrev_b32 v1, 2, v1")
e("v_lshl_add_u32 v19, v2, 3, v1")
e(f"s_mul_i32 {sT0}, {sW}, {QL_S}")
e(f"s_add_u32 {sT0}, {sT0}, {QL_L}")
e(f"v_add_u32 v20, {sT0}, v19")
e("v_and_b32 v2, 15, v0")
e("v_lshl_add_u32 v21, v2, 3, v1")
e("v_bfe_u32 v2, v0, 4, 1")
e(f"v_mul_u32_u24 v2, {HL_S}, v2")
e(f"s_mul_i32 {sT0}, {sW}, {2*HL_S}")
e(f"s_add_u32 {sT0}, {sT0}, {HL_L}")
e(f"v_add3_u32 v21, v21, v2, {sT0}")
e(f"s_mov_b32 {sSPIN}, 0")
lab("L_qpoll")
e(f"global_load_dwordx4 {vr(24,4)}, v16, {sWS} offset:-4096 sc1")
e(f"global_load_dwordx4 {vr(28,4)}, v16, {sWS} sc1")
e(f"s_add_u32 {sSPIN}, {sSPIN}, 1")
e(f"s_cmp_gt_u32 {sSPIN}, {SPIN_MAX}")
e("s_cbranch_scc1 L_qgot")
e("s_waitcnt vmcnt(0)")
check(list(range(24, 32)), 32, "L_qpoll")
lab("L_qgot")
e(f"s_cmp_eq_u32 {sKVH}, 7")
e("s_cbranch_scc1 L_nohissue")
def h_issue():
    e(f"global_load_dwordx4 {vr(40,4)}, v17, {sWS} offset:-4096 sc1")
    e(f"global_load_dwordx4 {vr(44,4)}, v17, {sWS} sc1")
    e(f"global_load_dwordx4 {vr(48,4)}, v18, {sWS} offset:-4096 sc1")
    e(f"global_load_dwordx4 {vr(52,4)}, v18, {sWS} sc1")
h_issue()
lab("L_nohissue")
for k in range(4): e(f"v_add_f32 v{24+k}, v{24+k}, v{28+k}")
e("s_nop 1")
e("v_permlane32_swap_b32 v24, v26")
e("v_permlane32_swap_b32 v25, v27")
e("v_add_f32 v24, v24, v26")
e("v_add_f32 v25, v25, v27")
e("v_cvt_pk_bf16_f32 v24, v24, v25")
e("ds_write_b32 v20, v24")
e("s_waitcnt lgkmcnt(0)")
ts(7)
e("s_barrier")
e("s_barrier")
c("h: finish gather, silu")
e(f"s_cmp_eq_u32 {sKVH}, 7")
e("s_cbranch_scc1 L_hdone")
e("s_branch L_hchk")
lab("L_hpoll")
h_issue()
e(f"s_add_u32 {sSPIN}, {sSPIN}, 1")
e(f"s_cmp_gt_u32 {sSPIN}, {SPIN_MAX}")
e("s_cbranch_scc1 L_hgot")
lab("L_hchk")
e("s_waitcnt vmcnt(0)")
check(list(range(40, 56)), 32, "L_hpoll")
lab("L_hgot")
for k in range(4):
    e(f"v_add_f32 v{40+k}, v{40+k}, v{44+k}")
    e(f"v_add_f32 v{48+k}, v{48+k}, v{52+k}")
for k in range(4): e(f"v_add_f32 v{40+k}, v{40+k}, v{48+k}")
e("s_nop 1")
e("v_permlane32_swap_b32 v40, v42")
e("v_permlane32_swap_b32 v41, v43")
e("v_add_f32 v40, v40, v42")
e("v_add_f32 v41, v41, v43")
round2(40, 41, 42)
e("v_mul_f32 v42, 0xbfb8aa3b, v40")
e("v_mul_f32 v43, 0xbfb8aa3b, v41")
e("v_exp_f32 v42, v42")
e("v_exp_f32 v43, v43")
e("s_nop 0")
e("v_add_f32 v42, 1.0, v42")
e("v_add_f32 v43, 1.0, v43")
e("v_rcp_f32 v42, v42")
e("v_rcp_f32 v43, v43")
e("s_nop 0")
e("v_mul_f32 v40, v40, v42")
e("v_mul_f32 v41, v41, v43")
e("v_cvt_pk_bf16_f32 v40, v40, v41")
e("ds_write_b32 v21, v40")
lab("L_hdone")
e("s_branch L_common")

lab("L_kv")
KD, DD = 32, 96
e(f"s_sub_u32 {sT0}, {sW}, 4")
e(f"s_lshl_b32 {sT1}, {sHI}, 3")
e(f"s_add_u32 {sT1}, {sT1}, {sKVH}")
e(f"s_lshl_b32 {sT1}, {sT1}, 20")
e(f"s_lshl_b32 {sT2}, {sLO}, 16")
e(f"s_add_u32 {sT1}, {sT1}, {sT2}")
e(f"s_add_u32 {sT1}, {sT1}, {768*1024}")
e("v_bfe_u32 v1, v0, 2, 2")
e("v_lshrrev_b32 v2, 4, v0")
e("v_lshlrev_b32 v3, 6, v2")
e("v_lshl_add_u32 v1, v1, 8, v3")
e("v_and_b32 v3, 3, v0")
e("v_lshl_add_u32 v1, v3, 4, v1")
e(f"s_lshl_b32 {sT2}, {sT0}, 14")
e(f"s_add_u32 {sT2}, {sT2}, {sT1}")
e(f"s_add_u32 {sT2}, {sT2}, 4096")
e(f"v_add_u32 v16, {sT2}, v1")
e("v_add_u32 v17, 0x2000, v16")
e(f"s_and_b32 {sT2}, {sT0}, 1")
e(f"s_lshl_b32 {sT2}, {sT2}, 2")
e(f"v_or_b32 v1, {sT2}, v2")
e("v_lshlrev_b32 v1, 1, v1")
e("v_and_b32 v3, 15, v0")
e("v_xor_b32 v1, v1, v3")
e("v_lshlrev_b32 v1, 4, v1")
e("v_lshl_add_u32 v1, v2, 8, v1")
e(f"s_lshl_b32 {sT2}, {sT0}, 11")
e(f"s_mov_b32 m0, {sT2}")
e(f"s_add_u32 {sT2}, {sT2}, {sT1}")
e(f"v_add_u32 v18, {sT2}, v1")
e("s_waitcnt lgkmcnt(0)")
ts(0)
e(f"s_load_dword {sEP}, {sWS}, {EP_G}")
e("s_barrier")
ts(1)
for i in range(16):
    e(f"global_load_dwordx4 {vr(KD+4*i,4)}, v{16 + i//8}, {sK} offset:{(i%8)*1024 - 4096} nt")
ts(2)
for t in range(8):
    e(f"global_load_lds_dwordx4 v18, {sV} nt")
    e(f"global_load_lds_dwordx4 v18, {sV} offset:1024 nt")
    if t < 7:
        e("s_add_u32 m0, m0, 0x2000")
        e("v_add_u32 v18, 0x2000, v18")
ts(3)
c("late weights")
e(f"v_lshl_add_u32 v1, v{vROW}, 10, v{vSRC}")
e(f"s_lshl_b32 {sT1}, {sHG}, 7")
e(f"s_lshl_b32 {sT2}, {sT0}, 5")
e(f"s_add_u32 {sT1}, {sT1}, {sT2}")
e(f"s_lshl_b32 {sT1}, {sT1}, 10")
e(f"s_lshl_b32 {sT3}, {sHI}, 7")
e(f"s_add_u32 {sT1}, {sT1}, {sT3}")
e(f"v_add_u32 v16, {sT1}, v1")
e("v_add_u32 v17, 0x2000, v16")
e("v_xor_b32 v17, 64, v17")
e(f"s_lshl_b32 {sT1}, {sRB}, 6")
e(f"s_lshl_b32 {sT2}, {sT0}, 4")
e(f"s_add_u32 {sT1}, {sT1}, {sT2}")
e(f"s_lshl_b32 {sT1}, {sT1}, 10")
e(f"s_add_u32 {sT1}, {sT1}, {sT3}")
e(f"v_add_u32 v18, {sT1}, v1")
e("v_add_u32 v19, 0x2000, v18")
e("v_xor_b32 v19, 64, v19")
e(f"s_lshl_b32 {sT1}, {sT0}, 12")
e(f"s_add_u32 m0, {sT1}, {W_L + WO_O}")
e(f"s_lshl_b32 {sT2}, {sT0}, 11")
e(f"global_load_lds_dwordx4 v16, {sWO} nt")
e("s_add_u32 m0, m0, 1024")
e("v_add_u32 v16, 0x4000, v16")
e(f"global_load_lds_dwordx4 v17, {sWO} nt")
e("s_add_u32 m0, m0, 1024")
e("v_add_u32 v17, 0x4000, v17")
e(f"global_load_lds_dwordx4 v16, {sWO} nt")
e("s_add_u32 m0, m0, 1024")
e("s_nop 0")
e(f"global_load_lds_dwordx4 v17, {sWO} nt")
e(f"s_add_u32 m0, {sT2}, {W_L + W2_O}")
e("s_nop 0")
e(f"global_load_lds_dwordx4 v18, {sW2} nt")
e("s_add_u32 m0, m0, 1024")
e("s_nop 0")
e(f"global_load_lds_dwordx4 v19, {sW2} nt")
ts(4)
e("s_waitcnt lgkmcnt(0)")
e(f"s_add_u32 {sEP}, {sEP}, 1")
e(f"s_and_b32 {sTAG}, {sEP}, 0xff")
e(f"s_mov_b32 {sMSK}, 0xffffff00")
e(f"v_mov_b32 v{vTAG}, {sTAG}")
c("q fragment address, max / P write addresses")
e("v_and_b32 v1, 3, v0")
e(f"v_mul_u32_u24 v2, {QL_S}, v1")
e("v_lshrrev_b32 v3, 2, v0")
e("v_lshl_add_u32 v2, v3, 4, v2")
e(f"v_add_u32 v16, {QL_L}, v2")
e(f"v_lshlrev_b32 v17, 4, v1")
e(f"v_add_u32 v17, {MX_L}, v17")
e(f"s_lshl_b32 {sT1}, {sT0}, 2")
e(f"v_add_u32 v18, {sT1}, v17")
e(f"v_mul_u32_u24 v2, {PL_S}, v1")
e("v_and_b32 v3, 12, v0")
e("v_lshrrev_b32 v1, 4, v0")
e("v_add_lshl_u32 v3, v3, v1, 1")
e(f"s_lshl_b32 {sT1}, {sT0}, 7")
e(f"s_add_u32 {sT1}, {sT1}, {PL_L}")
e(f"v_add3_u32 v19, v2, v3, {sT1}")
e("s_barrier")
ts(5)
e(f"ds_read_b128 {vr(8,4)}, v16")
e("s_waitcnt vmcnt(22) lgkmcnt(0)")
ts(6)
for i in range(16):
    e(f"v_mfma_f32_16x16x32_bf16 {vr(DD+4*i,4)}, {vr(KD+4*i,4)}, {vr(8,4)}, 0")
e("s_nop 2")
R = 20
for cc in range(4):
    for dlt in range(4):
        cp = (cc - dlt) & 3
        for t in range(4):
            src = DD + 4*(4*t + cc) + cp
            if dlt == 0:
                e(f"v_mov_b32_dpp v{R+t}, v{src} quad_perm:[0,1,2,3] row_mask:0xf bank_mask:{1<<cc:#x}")
            else:
                e(f"v_add_f32_dpp v{R+t}, v{src}, v{R+t} row_ror:{4*dlt} row_mask:0xf bank_mask:{1<<cc:#x}")
c("scores: bf16(bf16(qk) * scale)")
round2(R, R+1, 24); round2(R+2, R+3, 25)
for t in range(4): e(f"v_mul_f32 v{R+t}, 0x3db504f3, v{R+t}")
round2(R, R+1, 24); round2(R+2, R+3, 25)
e(f"v_max3_f32 v24, v{R}, v{R+1}, v{R+2}")
e(f"v_max_f32 v24, v24, v{R+3}")
e("s_nop 1")
e("v_max_f32_dpp v24, v24, v24 row_ror:4 row_mask:0xf bank_mask:0xf")
e("s_nop 1")
e("v_max_f32_dpp v24, v24, v24 row_ror:8 row_mask:0xf bank_mask:0xf")
e("v_mov_b32 v25, v24")
e("s_nop 1")
e("v_permlane16_swap_b32 v24, v25")
e("v_max_f32 v24, v24, v25")
e("v_mov_b32 v25, v24")
e("s_nop 1")
e("v_permlane32_swap_b32 v24, v25")
e("v_max_f32 v24, v24, v25")
e("s_mov_b64 exec, 15")
e("ds_write_b32 v18, v24")
e("s_mov_b64 exec, -1")
e("s_waitcnt lgkmcnt(0)")
ts(7)
e("s_barrier")
e(f"ds_read_b128 {vr(24,4)}, v17")
e("s_waitcnt lgkmcnt(0)")
e("v_max3_f32 v24, v24, v25, v26")
e("v_max_f32 v24, v24, v27")
for t in range(4): e(f"v_sub_f32 v{R+t}, v{R+t}, v24")
for t in range(4): e(f"v_mul_f32 v{R+t}, {LOG2E}, v{R+t}")
for t in range(4): e(f"v_exp_f32 v{R+t}, v{R+t}")
e("s_nop 0")
e(f"v_cvt_pk_bf16_f32 v24, v{R}, v{R+1}")
e(f"v_cvt_pk_bf16_f32 v25, v{R+2}, v{R+3}")
e("ds_write_b16 v19, v24")
e("ds_write_b16_d16_hi v19, v24 offset:32")
e("ds_write_b16 v19, v25 offset:64")
e("ds_write_b16_d16_hi v19, v25 offset:96")

lab("L_common")
PF, VF, OD = 32, 64, 112
c("addresses: P fragment, V transpose read, o publish, o/stats gather, o LDS write")
e("v_and_b32 v1, 3, v0")
e(f"v_mul_u32_u24 v2, {PL_S}, v1")
e("v_lshrrev_b32 v3, 4, v0")
e("v_lshl_add_u32 v2, v3, 4, v2")
e(f"v_add_u32 v8, {PL_L}, v2")
e("v_bfe_u32 v2, v0, 2, 2")
e("v_lshl_add_u32 v2, v3, 3, v2")
e("v_bfe_u32 v9, v0, 2, 3")
e(f"v_xor_b32 v9, {sW}, v9")
e("v_lshlrev_b32 v9, 5, v9")
e("v_lshl_add_u32 v9, v2, 8, v9")
e("v_lshl_add_u32 v9, v1, 3, v9")
e(f"s_lshl_b32 {sT0}, {sKVH}, 16")
e(f"s_lshl_b32 {sT1}, {sR}, 9")
e(f"s_add_u32 {sT0}, {sT0}, {sT1}")
e(f"s_lshl_b32 {sT1}, {sW}, 6")
e(f"s_add_u32 {sT0}, {sT0}, {sT1}")
e(f"s_add_u32 {sT0}, {sT0}, {OG_G}")
e("v_lshlrev_b32 v2, 14, v1")
e("v_lshl_add_u32 v2, v3, 4, v2")
e(f"v_add_u32 v10, {sT0}, v2")
e(f"s_lshl_b32 {sT0}, {sHG}, 14")
e(f"s_lshl_b32 {sT1}, {sW}, 11")
e(f"s_add_u32 {sT0}, {sT0}, {sT1}")
e(f"s_add_u32 {sT0}, {sT0}, {OG_G}")
e(f"v_lshl_add_u32 v11, v0, 4, {sT0}")
e(f"s_lshl_b32 {sT0}, {sHG}, 9")
e(f"s_lshl_b32 {sT1}, {sW}, 6")
e(f"s_add_u32 {sT0}, {sT0}, {sT1}")
e(f"s_add_u32 {sT0}, {sT0}, {SG_G}")
e(f"v_lshl_add_u32 v12, v1, 4, {sT0}")
e("v_and_b32 v2, 31, v0")
e("v_lshrrev_b32 v13, 5, v0")
e("v_lshlrev_b32 v13, 2, v13")
e("v_lshl_add_u32 v13, v2, 3, v13")
e(f"s_mul_i32 {sT0}, {sW}, {OL_S}")
e(f"s_add_u32 {sT0}, {sT0}, {OL_L}")
e(f"v_add_u32 v13, {sT0}, v13")
e("s_waitcnt lgkmcnt(0)")
e("s_barrier")
ts(8)
for t in range(8):
    e(f"ds_read_b128 {vr(PF+4*t,4)}, v8 offset:{t*64}")
e(f"s_cmp_lg_u32 {sW}, 0")
e("s_cbranch_scc1 L_nostats")
c("wave 0: row sums of P by MFMA with ones, publish (m, l)")
e(f"v_lshlrev_b32 v14, 4, v1")
e(f"v_add_u32 v14, {MX_L}, v14")
e(f"ds_read_b128 {vr(24,4)}, v14")
for k in range(4): e(f"v_mov_b32 v{20+k}, 0x3f803f80")
e(f"s_lshl_b32 {sT0}, {sKVH}, 11")
e(f"s_lshl_b32 {sT1}, {sR}, 4")
e(f"s_add_u32 {sT0}, {sT0}, {sT1}")
e(f"s_add_u32 {sT0}, {sT0}, {SG_G}")
e(f"v_lshl_add_u32 v14, v1, 9, {sT0}")
e("s_waitcnt lgkmcnt(0)")
for t in range(8):
    e(f"v_mfma_f32_16x16x32_bf16 {vr(28,4)}, {vr(20,4)}, {vr(PF+4*t,4)}, " + ("0" if t == 0 else vr(28,4)))
e("v_max3_f32 v24, v24, v25, v26")
e("v_max_f32 v24, v24, v27")
e("s_mov_b64 exec, 15")
e("s_nop 4")
e("v_mov_b32 v26, v24")
e("v_mov_b32 v25, v28")
e("v_mov_b32 v27, v28")
tag4(24)
e(f"global_store_dwordx4 v14, {vr(24,4)}, {sWS} sc1")
e("s_mov_b64 exec, -1")
lab("L_nostats")
def pv(tiles, first):
    for n, t in enumerate(tiles):
        e(f"ds_read_b64_tr_b16 {vr(VF+4*n,2)}, v9 offset:{t*8192}")
        e(f"ds_read_b64_tr_b16 {vr(VF+4*n+2,2)}, v9 offset:{t*8192+1024}")
    for n, t in enumerate(tiles):
        e(f"s_waitcnt lgkmcnt({2*(len(tiles)-1-n)})")
        e(f"v_mfma_f32_16x16x32_bf16 {vr(OD,4)}, {vr(VF+4*n,4)}, {vr(PF+4*t,4)}, " + ("0" if first and n == 0 else vr(OD,4)))
e("s_waitcnt vmcnt(10) lgkmcnt(0)")
e("s_barrier")
ts(9)
pv([0,1,2,3,4,5], True)
e(f"global_load_dwordx4 {vr(16,4)}, v12, {sWS} sc1")
e("s_waitcnt vmcnt(9)")
e("s_barrier")
pv([6], False)
e("s_waitcnt vmcnt(7)")
e("s_barrier")
ts(10)
pv([7], False)
e("s_mov_b32 exec_lo, 0x000f000f")
e("s_mov_b32 exec_hi, 0x000f000f")
e("s_nop 5")
tag4(OD)
e(f"global_store_dwordx4 v10, {vr(OD,4)}, {sWS} sc1")
e("s_mov_b64 exec, -1")
e(f"global_load_dwordx4 {vr(24,4)}, v11, {sWS} sc1")
e(f"global_load_dwordx4 {vr(28,4)}, v11, {sWS} offset:1024 sc1")
e("s_waitcnt vmcnt(4)")
e("s_barrier")
ts(11)
WF, W2F, HF, FD = 64, 80, 88, 116
e(f"s_cmp_ge_u32 {sW}, 4")
e("s_cbranch_scc1 L_nowf")
for s in range(2):
    e(f"ds_read_b64_tr_b16 {vr(W2F+4*s,2)}, v{vWT} offset:{W2_O + s*4096}")
    e(f"ds_read_b64_tr_b16 {vr(W2F+4*s+2,2)}, v{vWT} offset:{W2_O + s*4096 + 512}")
e("v_and_b32 v1, 7, v0")
e(f"v_mul_u32_u24 v2, {HL_S}, v1")
e("v_lshl_add_u32 v2, v3, 4, v2")
e(f"v_add_u32 v2, {HL_L}, v2")
e(f"ds_read_b128 {vr(HF,4)}, v2")
e(f"ds_read_b128 {vr(HF+4,4)}, v2 offset:64")
for s in range(4):
    e(f"ds_read_b64_tr_b16 {vr(WF+4*s,2)}, v{vWT} offset:{WO_O + s*4096}")
    e(f"ds_read_b64_tr_b16 {vr(WF+4*s+2,2)}, v{vWT} offset:{WO_O + s*4096 + 512}")
e(f"v_mul_u32_u24 v14, {OL_S}, v1")
e("v_lshl_add_u32 v14, v3, 4, v14")
e(f"v_add_u32 v14, {OL_L}, v14")
c("final publish offset: ((hi*4+s)*8 + b)*2048 + hg*64 + g*16")
e(f"s_lshl_b32 {sT0}, {sHI}, 2")
e(f"s_add_u32 {sT0}, {sT0}, {sW}")
e(f"s_lshl_b32 {sT0}, {sT0}, 14")
e(f"s_lshl_b32 {sT1}, {sHG}, 6")
e(f"s_add_u32 {sT0}, {sT0}, {sT1}")
e(f"s_add_u32 {sT0}, {sT0}, {FG_G}")
e("v_lshlrev_b32 v15, 11, v1")
e("v_lshl_add_u32 v15, v3, 4, v15")
e(f"v_add_u32 v15, {sT0}, v15")
for k in range(4): e(f"v_mov_b32 v{FD+k}, 0")
e(f"s_cmp_eq_u32 {sKVH}, 7")
e("s_cbranch_scc1 L_nowf")
e("s_waitcnt lgkmcnt(8)")
e(f"v_mfma_f32_16x16x32_bf16 {vr(FD,4)}, {vr(W2F,4)}, {vr(HF,4)}, 0")
e(f"v_mfma_f32_16x16x32_bf16 {vr(FD,4)}, {vr(W2F+4,4)}, {vr(HF+4,4)}, {vr(FD,4)}")
lab("L_nowf")
e(f"s_mov_b32 {sSPIN}, 0")
e("s_waitcnt vmcnt(3)")
e("s_branch L_schk")
lab("L_spoll")
e(f"global_load_dwordx4 {vr(16,4)}, v12, {sWS} sc1")
e(f"s_add_u32 {sSPIN}, {sSPIN}, 1")
e(f"s_cmp_gt_u32 {sSPIN}, {SPIN_MAX}")
e("s_cbranch_scc1 L_sgot")
e("s_waitcnt vmcnt(0)")
lab("L_schk")
check([16,17,18,19], 20, "L_spoll")
lab("L_sgot")
c("alpha[c] = exp(m_c - m) / sum_c(l_c exp(m_c - m)), c = l&3")
e("v_max_f32_dpp v18, v16, v16 quad_perm:[1,0,3,2] row_mask:0xf bank_mask:0xf")
e("s_nop 1")
e("v_max_f32_dpp v18, v18, v18 quad_perm:[2,3,0,1] row_mask:0xf bank_mask:0xf")
e("v_sub_f32 v16, v16, v18")
e(f"v_mul_f32 v16, {LOG2E}, v16")
e("v_exp_f32 v16, v16")
e("s_nop 0")
e("v_mul_f32 v17, v16, v17")
e("s_nop 1")
e("v_add_f32_dpp v17, v17, v17 quad_perm:[1,0,3,2] row_mask:0xf bank_mask:0xf")
e("s_nop 1")
e("v_add_f32_dpp v17, v17, v17 quad_perm:[2,3,0,1] row_mask:0xf bank_mask:0xf")
e("v_rcp_f32 v17, v17")
e("s_nop 0")
e("v_mul_f32 v16, v16, v17")
e("s_nop 1")
e("v_mov_b32_dpp v18, v16 quad_perm:[0,0,0,0] row_mask:0x3 bank_mask:0xf")
e("v_mov_b32_dpp v19, v16 quad_perm:[2,2,2,2] row_mask:0x3 bank_mask:0xf")
e("s_nop 0")
e("v_mov_b32_dpp v18, v16 quad_perm:[1,1,1,1] row_mask:0xc bank_mask:0xf")
e("v_mov_b32_dpp v19, v16 quad_perm:[3,3,3,3] row_mask:0xc bank_mask:0xf")
ts(12)
e("s_branch L_ochk")
lab("L_opoll")
e(f"global_load_dwordx4 {vr(24,4)}, v11, {sWS} sc1")
e(f"global_load_dwordx4 {vr(28,4)}, v11, {sWS} offset:1024 sc1")
e(f"s_add_u32 {sSPIN}, {sSPIN}, 1")
e(f"s_cmp_gt_u32 {sSPIN}, {SPIN_MAX}")
e("s_cbranch_scc1 L_ogot")
lab("L_ochk")
e("s_waitcnt vmcnt(0)")
check(list(range(24, 32)), 20, "L_opoll")
lab("L_ogot")
for k in range(4): e(f"v_mul_f32 v{24+k}, v18, v{24+k}")
for k in range(4): e(f"v_fmac_f32 v{24+k}, v19, v{28+k}")
e("s_nop 1")
e("v_permlane32_swap_b32 v24, v26")
e("v_permlane32_swap_b32 v25, v27")
e("v_add_f32 v24, v24, v26")
e("v_add_f32 v25, v25, v27")
e("v_cvt_pk_bf16_f32 v24, v24, v25")
e("ds_write_b32 v13, v24")
e("s_waitcnt lgkmcnt(0)")
e("s_barrier")
ts(13)
e(f"s_cmp_ge_u32 {sW}, 4")
e("s_cbranch_scc1 L_fin")
OF = 96
for s in range(4): e(f"ds_read_b128 {vr(OF+4*s,4)}, v14 offset:{s*64}")
for s in range(4):
    e(f"s_waitcnt lgkmcnt({3-s})")
    e(f"v_mfma_f32_16x16x32_bf16 {vr(FD,4)}, {vr(WF+4*s,4)}, {vr(OF+4*s,4)}, {vr(FD,4)}")
e("s_mov_b32 exec_lo, 0x00ff00ff")
e("s_mov_b32 exec_hi, 0x00ff00ff")
e("s_nop 5")
tag4(FD)
e(f"global_store_dwordx4 v15, {vr(FD,4)}, {sWS} sc1")
e("s_mov_b64 exec, -1")
ts(14)
e(f"s_cmp_lg_u32 {sW}, 0")
e("s_cbranch_scc1 L_fin")
c("reducer (b = hi, ctg = hg)")
e(f"s_lshl_b32 {sT0}, {sHG}, 14")
e(f"s_lshl_b32 {sT1}, {sHI}, 11")
e(f"s_add_u32 {sT0}, {sT0}, {sT1}")
e(f"s_add_u32 {sT0}, {sT0}, {FG_G}")
e(f"v_lshl_add_u32 v11, v0, 4, {sT0}")
e(f"v_lshlrev_b32 v{vRX}, 16, v{vRX}")
lab("L_fpoll")
e(f"global_load_dwordx4 {vr(24,4)}, v11, {sWS} sc1")
e(f"global_load_dwordx4 {vr(28,4)}, v11, {sWS} offset:1024 sc1")
e(f"s_add_u32 {sSPIN}, {sSPIN}, 1")
e(f"s_cmp_gt_u32 {sSPIN}, {SPIN_MAX}")
e("s_cbranch_scc1 L_fgot")
e("s_waitcnt vmcnt(0)")
check(list(range(24, 32)), 20, "L_fpoll")
lab("L_fgot")
for k in range(4): e(f"v_add_f32 v{24+k}, v{24+k}, v{28+k}")
e("s_nop 1")
e("v_permlane32_swap_b32 v24, v26")
e("v_permlane32_swap_b32 v25, v27")
e("v_add_f32 v24, v24, v26")
e("v_add_f32 v25, v25, v27")
e("s_nop 1")
e("v_permlane16_swap_b32 v24, v25")
e("v_add_f32 v24, v24, v25")
e("s_nop 1")
e("v_add_f32_dpp v24, v24, v24 row_ror:4 row_mask:0xf bank_mask:0xf")
e("s_nop 1")
e("v_add_f32_dpp v24, v24, v24 row_ror:8 row_mask:0xf bank_mask:0xf")
e(f"v_add_f32 v24, v24, v{vRX}")
e("v_cvt_pk_bf16_f32 v24, v24, v24")
e("s_mov_b32 exec_lo, 0x000f000f")
e("s_mov_b32 exec_hi, 0x000f000f")
e(f"global_store_short v{vRO}, v24, {sOUT}")
e("s_cmp_lg_u32 s2, 0")
e("s_cbranch_scc1 L_fin0")
c("workgroup 0 has (transitively) heard from every workgroup: advance the epoch")
e("s_mov_b64 exec, 1")
e(f"v_mov_b32 v1, {EP_G}")
e(f"v_mov_b32 v2, {sEP}")
e(f"global_store_dword v1, v2, {sWS}")
lab("L_fin0")
e("s_mov_b64 exec, -1")
ts(15)
lab("L_fin")
ts_flush()
lab("L_end")
e("s_endpgm")
L.append(".p2align 8")
L.append(".fill 512, 4, 0xbf810000" if False else "")
L.append(f""".section .rodata,"a"
.p2align 6
.amdhsa_kernel {NAME}_kernel
  .amdhsa_next_free_vgpr 208
  .amdhsa_next_free_sgpr 64
  .amdhsa_accum_offset 208
  .amdhsa_group_segment_fixed_size 0
  .amdhsa_kernarg_size 88
  .amdhsa_user_sgpr_count 2
  .amdhsa_user_sgpr_kernarg_segment_ptr 1
  .amdhsa_system_sgpr_workgroup_id_x 1
  .amdhsa_float_denorm_mode_32 3
.end_amdhsa_kernel""")
open(OUT, "w").write("\n".join(L) + "\n")
```

```python
import sys
NAME = "parallel_sum__sliding_block_cached__dense_activation_silu__decode"
opts = dict(a.split("=") for a in sys.argv[2:])
OUT = sys.argv[1] if len(sys.argv) > 1 else f"cdna_kernels/{NAME}.s"
def opt(k, d): return int(opts.get(k, d))
PROFILE = opt("prof", 0)
NK, NV, NL, SW = opt("nk", 24), opt("nv", 24), opt("nl", 24), opt("sw", 32)
GP = opt("gp", 14)
SLP_Q, SLP_O, SLP_F = opt("slq", 4), opt("slo", 1), opt("slf", 1)
PRE_F, QPLAIN, OPLAIN = opt("pref", 1), opt("qplain", 0), opt("oplain", 1)
QPRE = opt("qpre", 1)
NOPUB, NOGQ, NOGH, OPRE = opt("nopub", 0), opt("nogq", 0), opt("nogh", 0), opt("opre", 1)
ONT = " nt" if opt("ont", 0) else ""
FNT = " nt" if opt("fnt", 0) else ""
NWAVES = 10

L = []
def e(s): L.append("    " + s)
def lab(s): L.append(s + ":")
def c(s): L.append("    ; " + s)
def vr(a, n): return f"v[{a}:{a+n-1}]"

K_L, V_L, W_L = 0, 65536, 131072
WA_O, WB_O = 0, 16384
M_L = 155648
QL_L, QL_S = M_L, 288
PL_L, PL_S = QL_L + 4*288, 544
HL_L, HL_S = PL_L + 4*544, 160
MX_L = HL_L + 8*160
FL_L = MX_L + 128
XN_L, XN_S = FL_L + 64, 416
XR_L = XN_L + 8*XN_S
OL_L, OL_S = K_L, 288
LDS_BYTES = 163840
assert XR_L + 32 <= LDS_BYTES
F_GO, F_S0, F_WF, F_S1, F_S2, F_S3, F_KL, F_V5, F_V6 = 0, 4, 8, 12, 16, 20, 24, 28, 32
EP_G = 0
SG_G = 0x8000
QG_G = 0x10000
HG_G = QG_G + 0x80000
OG_G = HG_G + 0x70000
FG_G = OG_G + 0x80000
TS_G = 0x400000
assert FG_G + 0x80000 <= 0x200000
sX, sK, sV, sWQ, sWO, sW1, sW2, sOUT, sDBG, sWS = "s[4:5]", "s[6:7]", "s[8:9]", "s[10:11]", "s[12:13]", "s[16:17]", "s[18:19]", "s[20:21]", "s[22:23]", "s[24:25]"
sKVH, sR, sHI, sLO, sW, sEP, sTAG, sHG, sRB, sT0, sMSK, sSPIN = "s26", "s27", "s28", "s29", "s30", "s31", "s32", "s33", "s34", "s35", "s36", "s37"
sT1, sT2, sT3, sT4, sT5, sCT = "s42", "s43", "s44", "s45", "s46", "s47"
sFAST, sXC, sDO = "s54", "s55", "s3"
sXT = ["s60", "s61", "s62", "s63"]
AN = 64
SPIN_MAX = 1 << 18
LOG2E = "0x3fb8aa3b"
vTS = 120
def ts(k):
    if PROFILE:
        e("s_memrealtime s[40:41]")
        e("s_waitcnt lgkmcnt(0)")
        e(f"v_writelane_b32 v{vTS}, s40, {k}")
def ts_flush():
    if PROFILE:
        e(f"v_writelane_b32 v{vTS}, s48, 0")
        e("s_mov_b64 exec, 0xffffff")
        e(f"s_mul_i32 {sT0}, s2, {NWAVES}")
        e(f"s_add_u32 {sT0}, {sT0}, {sW}")
        e(f"s_lshl_b32 {sT0}, {sT0}, 7")
        e(f"s_add_u32 {sT0}, {sT0}, {TS_G}")
        e(f"v_lshl_add_u32 v{vTS+1}, v0, 2, {sT0}")
        e(f"global_store_dword v{vTS+1}, v{vTS}, {sWS}")

vTAG, vWT, vFL, vONE, vG = 6, 7, 8, 9, 3
vRO, vFP = 117, 118

def tag4(r):
    for k in range(4):
        e(f"v_and_or_b32 v{r+k}, v{r+k}, {sMSK}, v{vTAG}")
def pub(name, addr, r, allow_plain):
    if allow_plain:
        e(f"s_cmp_lg_u32 {sFAST}, 0")
        e(f"s_cbranch_scc1 {name}_wt")
        e(f"global_store_dwordx4 v{addr}, {vr(r,4)}, {sWS}")
        e(f"s_branch {name}_ok")
        lab(f"{name}_wt")
    e(f"global_store_dwordx4 v{addr}, {vr(r,4)}, {sWS} sc1")
    lab(f"{name}_ok")
def an_load(): e(f"s_load_dwordx8 s[{AN}:{AN+7}], {sDBG}, {sDO} glc")
def an_diff(dst, want, mask):
    for k in range(8): e(f"s_xor_b32 s{AN+k}, s{AN+k}, {want}")
    e(f"s_or_b64 s[{AN}:{AN+1}], s[{AN}:{AN+1}], s[{AN+2}:{AN+3}]")
    e(f"s_or_b64 s[{AN+4}:{AN+5}], s[{AN+4}:{AN+5}], s[{AN+6}:{AN+7}]")
    e(f"s_or_b64 s[{AN}:{AN+1}], s[{AN}:{AN+1}], s[{AN+4}:{AN+5}]")
    e(f"s_or_b32 {dst}, s{AN}, s{AN+1}")
    e(f"s_and_b32 {dst}, {dst}, {mask}")
def arrive(f):
    e("s_mov_b64 exec, 1")
    e(f"ds_add_u32 v{vFL}, v{vONE} offset:{f}")
    e("s_mov_b64 exec, -1")
def wait_flag(name, f, thr, sleep=0):
    if sleep:
        e(f"s_branch {name}")
        lab(name + "_z")
        e(f"s_sleep {sleep}")
    lab(name)
    e(f"ds_read_b32 v1, v{vFL} offset:{f}")
    e("s_waitcnt lgkmcnt(0)")
    e(f"v_readfirstlane_b32 {sT0}, v1")
    e(f"s_cmp_lt_u32 {sT0}, {thr}")
    e(f"s_cbranch_scc1 {name}" + ("_z" if sleep else ""))
def poll(name, loads, regs, tmp, sleep, issued=True, tags=None):
    if issued: e(f"s_branch {name}_chk")
    lab(f"{name}_poll")
    loads()
    lab(f"{name}_chk")
    e("s_waitcnt vmcnt(0)")
    for n, r in enumerate(regs): e(f"v_xor_b32 v{r}, {tags[n] if tags else sTAG}, v{r}")
    e(f"v_or3_b32 v{tmp}, v{regs[0]}, v{regs[1]}, v{regs[2]}")
    rest = regs[3:]
    while len(rest) >= 2:
        e(f"v_or3_b32 v{tmp}, v{tmp}, v{rest[0]}, v{rest[1]}"); rest = rest[2:]
    if rest: e(f"v_or_b32 v{tmp}, v{tmp}, v{rest[0]}")
    e(f"v_and_b32 v{tmp}, 0xff, v{tmp}")
    e(f"s_add_u32 {sSPIN}, {sSPIN}, 1")
    e(f"s_cmp_gt_u32 {sSPIN}, {SPIN_MAX}")
    e(f"v_or_b32_dpp v{tmp}, v{tmp}, v{tmp} quad_perm:[1,0,3,2] row_mask:0xf bank_mask:0xf")
    e(f"s_cbranch_scc1 {name}_done")
    e("s_nop 0")
    e(f"v_or_b32_dpp v{tmp}, v{tmp}, v{tmp} quad_perm:[2,3,0,1] row_mask:0xf bank_mask:0xf")
    e(f"v_cmp_ne_u32 vcc, 0, v{tmp}")
    e(f"s_cbranch_vccz {name}_done")
    e("s_mov_b64 exec, vcc")
    if sleep: e(f"s_sleep {sleep}")
    e(f"s_branch {name}_poll")
    lab(f"{name}_done")
    e("s_mov_b64 exec, -1")
def round2(a, b, t):
    e(f"v_cvt_pk_bf16_f32 v{t}, v{a}, v{b}")
    e(f"v_lshlrev_b32 v{a}, 16, v{t}")
    e(f"v_and_b32 v{b}, 0xffff0000, v{t}")
def round1(a):
    e(f"v_cvt_pk_bf16_f32 v{a}, v{a}, v{a}")
    e(f"v_lshlrev_b32 v{a}, 16, v{a}")
def fold4(r):
    e("s_nop 1")
    e(f"v_permlane32_swap_b32 v{r}, v{r+2}")
    e(f"v_permlane32_swap_b32 v{r+1}, v{r+3}")
    e(f"v_add_f32 v{r}, v{r}, v{r+2}")
    e(f"v_add_f32 v{r+1}, v{r+1}, v{r+3}")
    e("s_nop 1")
    e(f"v_permlane16_swap_b32 v{r}, v{r+1}")
    e(f"v_add_f32 v{r}, v{r}, v{r+1}")

hdr = open(f"cdna_kernels/{NAME}.s.ref").read().split("; Override launch geometry")[0]
L.append(hdr.rstrip("\n"))
L.append(f"; @launch grid=(256,1,1) block=({NWAVES*64},1,1) lds={LDS_BYTES}")
L.append('.amdgcn_target "amdgcn-amd-amdhsa--gfx950"')
L.append(".text")
L.append(f".globl {NAME}_kernel")
L.append(".p2align 8")
L.append(f".type {NAME}_kernel,@function")
lab(f"{NAME}_kernel")
if PROFILE: e("s_memrealtime s[48:49]")
e("s_cmp_ge_u32 s2, 256")
e("s_cbranch_scc1 L_end")
e("s_load_dwordx16 s[4:19], s[0:1], 0")
e("s_load_dwordx4 s[20:23], s[0:1], 64")
e("s_load_dwordx2 s[24:25], s[0:1], 80")
e("s_getpc_b64 s[38:39]")
e("v_lshrrev_b32 v1, 6, v0")
e("v_and_b32 v0, 63, v0")
e(f"s_and_b32 {sKVH}, s2, 7")
e(f"v_readfirstlane_b32 {sW}, v1")
e(f"s_lshr_b32 {sR}, s2, 3")
e(f"s_lshr_b32 {sHI}, s2, 5")
e(f"s_and_b32 {sLO}, {sR}, 3")
e(f"s_lshl_b32 {sHG}, {sKVH}, 2")
e(f"s_add_u32 {sHG}, {sHG}, {sLO}")
e(f"s_min_u32 {sRB}, {sHG}, 27")
if PROFILE: e(f"v_mov_b32 v{vTS}, 0")
e(f"v_lshrrev_b32 v{vG}, 4, v0")
e(f"v_mov_b32 v{vFL}, {FL_L}")
e(f"v_mov_b32 v{vONE}, 1")
c("waves: 0 loader, 1 helper, 2..9 compute (renumbered 8, 9, 0..7)")
e(f"s_add_u32 {sW}, {sW}, 8")
e(f"s_cmp_eq_u32 {sW}, 8")
e("s_cbranch_scc1 L_ld")
e(f"s_cmp_eq_u32 {sW}, 9")
e("s_cbranch_scc1 L_hp")
e(f"s_sub_u32 {sW}, {sW}, 10")
e(f"s_lshl_b32 {sT0}, {sW}, 10")
e(f"v_lshl_add_u32 v10, v0, 4, {sT0}")
e("s_waitcnt lgkmcnt(0)")
e(f"global_load_dwordx4 v[16:19], v10, {sX} nt")
e(f"s_load_dword {sEP}, {sWS}, {EP_G}")
e("s_branch L_c")

lab("L_ld")
e("s_setprio 3")
c("weight tiles: row = l>>3, source byte = ((l&7) ^ ((l>>3)&2)) * 16, odd instructions flip byte bit 6")
e("v_lshrrev_b32 v4, 3, v0")
e("v_and_b32 v5, 7, v0")
e("v_and_b32 v1, 2, v4")
e("v_xor_b32 v5, v5, v1")
e("v_lshlrev_b32 v5, 4, v5")
e(f"s_lshl_b32 {sT0}, {sLO}, 20")
e(f"s_lshl_b32 {sT1}, {sKVH}, 10")
e(f"s_add_u32 {sT0}, {sT0}, {sT1}")
e(f"s_lshl_b32 {sT3}, {sHI}, 7")
e(f"s_add_u32 {sT0}, {sT0}, {sT3}")
e("v_lshl_add_u32 v10, v4, 13, v5")
e(f"v_add_u32 v10, {sT0}, v10")
e("v_add_u32 v11, 0x10000, v10")
e("v_xor_b32 v11, 64, v11")
e(f"s_mul_i32 {sT0}, {sHI}, {64*3584}")
e(f"s_lshl_b32 {sT1}, {sRB}, 7")
e(f"s_add_u32 {sT0}, {sT0}, {sT1}")
e("v_mul_u32_u24 v12, 3584, v4")
e(f"v_add3_u32 v12, v12, v5, {sT0}")
e(f"v_add_u32 v13, {8*3584}, v12")
e("v_xor_b32 v13, 64, v13")
e(f"s_mov_b32 m0, {W_L}")
e(f"s_mov_b32 {sT0}, 8")
e("s_waitcnt lgkmcnt(0)")
ts(7)
def wloop(name, base, r, step, n, cnt, thr):
    if cnt is not None: e(f"s_mov_b32 {sT0}, {cnt}")
    lab(name)
    for k in range(2):
        if thr: e(f"s_waitcnt vmcnt({thr-1})")
        e(f"global_load_lds_dwordx4 v{r+k}, {base} nt")
        e("s_add_u32 m0, m0, 1024")
        e(f"v_add_u32 v{r+k}, {step}, v{r+k}")
    e(f"s_sub_u32 {sT0}, {sT0}, 1")
    e(f"s_cmp_lg_u32 {sT0}, 0")
    e(f"s_cbranch_scc1 {name}")
wloop("L_wq", sWQ, 10, "0x20000", 16, None, 0)
wloop("L_w1", sW1, 12, 16*3584, 8, 4, 0)
ts(1)
c("K / V source offsets (swizzled inside each 256-byte row)")
e(f"s_lshl_b32 {sT1}, {sHI}, 3")
e(f"s_add_u32 {sT1}, {sT1}, {sKVH}")
e(f"s_lshl_b32 {sT1}, {sT1}, 20")
e(f"s_lshl_b32 {sT2}, {sLO}, 16")
e(f"s_add_u32 {sT1}, {sT1}, {sT2}")
e(f"s_add_u32 {sT1}, {sT1}, {768*1024}")
e("v_and_b32 v1, 15, v0")
e(f"v_lshl_add_u32 v2, v{vG}, 8, {sT1}")
e(f"v_xor_b32 v10, v1, v{vG}")
e("v_lshl_add_u32 v10, v10, 4, v2")
e("v_xor_b32 v11, 64, v10")
e("v_xor_b32 v12, 128, v10")
e("v_xor_b32 v13, 192, v10")
e(f"v_lshlrev_b32 v14, 1, v{vG}")
e("v_xor_b32 v14, v1, v14")
e("v_lshl_add_u32 v14, v14, 4, v2")
e("v_xor_b32 v15, 128, v14")
e("s_mov_b32 m0, 0")
e("s_barrier")
if PROFILE > 1:
    ts(8)
    for k, n in enumerate((23, 19, 15, 11, 7, 3, 0)):
        e(f"s_waitcnt vmcnt({n})")
        ts(9 + k)
def signal(f):
    if f == F_S0: arrive(F_S0)
    else: e(f"ds_write_b32 v{vFL}, v{vONE} offset:{f}")
def stream_loop(name, base, regs, ngroups, n):
    lo, hi = base[2:-1].split(":")
    if ngroups > 1:
        e(f"s_mov_b32 {sT0}, {ngroups}")
        lab(name)
    for k in range(4):
        e(f"s_waitcnt vmcnt({n-1})")
        e(f"global_load_lds_dwordx4 v{regs[k]}, {base} offset:{k*1024} nt")
    e(f"s_add_u32 s{lo}, s{lo}, 4096")
    e(f"s_addc_u32 s{hi}, s{hi}, 0")
    e("s_add_u32 m0, m0, 4096")
    if ngroups > 1:
        e(f"s_sub_u32 {sT0}, {sT0}, 1")
        e(f"s_cmp_lg_u32 {sT0}, 0")
        e(f"s_cbranch_scc1 {name}")
NG = [NK]*16 + [NV]*(SW-16) + [NL]*(32-SW)
sig = {}
sig.setdefault(GP-1, []).append(F_GO)
pend = [(-1, F_S0), (63, F_KL), (64+47, F_V5), (64+55, F_V6)]
for g in range(32):
    while pend and 4*g + 3 - NG[g] >= pend[0][0]:
        sig.setdefault(g, []).append(pend.pop(0)[1])
g = 0
while g < 32:
    h = g
    while h + 1 < 32 and h not in sig and NG[h+1] == NG[g] and (h+1) != 16: h += 1
    stream_loop(f"L_g{g}", sK if g < 16 else sV, [10,11,12,13] if g < 16 else [14,14,15,15], h - g + 1, NG[g])
    for f in sig.get(h, []):
        signal(f)
        if f == F_S0: ts(6)
    if h == 15: ts(2)
    g = h + 1
ts(3)
c("late weights into the (now free) weight area")
e("v_lshl_add_u32 v1, v4, 10, v5")
e(f"s_lshl_b32 {sT1}, {sHG}, 17")
e(f"s_add_u32 {sT1}, {sT1}, {sT3}")
e(f"v_add_u32 v10, {sT1}, v1")
e("v_add_u32 v11, 0x2000, v10")
e("v_xor_b32 v11, 64, v11")
e(f"s_lshl_b32 {sT1}, {sRB}, 16")
e(f"s_add_u32 {sT1}, {sT1}, {sT3}")
e(f"v_add_u32 v12, {sT1}, v1")
e("v_add_u32 v13, 0x2000, v12")
e("v_xor_b32 v13, 64, v13")
wait_flag("L_wfree", F_WF, 8)
pend.append((127, None))
for i in range(24):
    e(f"s_waitcnt vmcnt({NL-1})")
    bar = False
    while pend and 128 + i - NL >= pend[0][0]:
        f = pend.pop(0)[1]
        if f is None: bar = True
        else: signal(f)
    r = (10 if i < 16 else 12) + (i & 1)
    e(f"global_load_lds_dwordx4 v{r}, {sWO if i < 16 else sW2} nt")
    if bar: e("s_barrier")
    e("s_add_u32 m0, m0, 1024")
    e(f"v_add_u32 v{r}, 0x4000, v{r}")
ts(4)
for (last, f) in pend:
    e(f"s_waitcnt vmcnt({151 - last})")
    if f is None: e("s_barrier")
    else: signal(f)
e("s_waitcnt vmcnt(0)")
ts(5)
e("s_barrier")
e("s_branch L_fin")

lab("L_hp")
e(f"v_lshl_add_u32 v1, v0, 2, v{vFL}")
e("v_mov_b32 v2, 0")
e("s_mov_b64 exec, 0xffff")
e("ds_write_b32 v1, v2")
e("s_mov_b64 exec, -1")
c("lines this workgroup will publish into: written whole with zeros first, so that they are resident in L2")
for k in range(4): e(f"v_mov_b32 v{24+k}, 0")
e(f"s_lshl_b32 {sT0}, {sKVH}, 16")
e(f"s_lshl_b32 {sT1}, {sR}, 9")
e(f"s_add_u32 {sT1}, {sT1}, {sT0}")
e(f"s_add_u32 {sT1}, {sT1}, {OG_G}")
e("v_lshrrev_b32 v1, 5, v0")
e("v_and_b32 v2, 31, v0")
e("v_lshlrev_b32 v2, 4, v2")
e("v_lshl_add_u32 v1, v1, 14, v2")
e(f"v_add_u32 v10, {sT1}, v1")
e("v_add_u32 v11, 0x8000, v10")
e(f"s_lshl_b32 {sT1}, {sLO}, 11")
e(f"s_add_u32 {sT0}, {sT0}, {sT1}")
e(f"s_lshl_b32 {sT1}, {sHI}, 8")
e(f"s_add_u32 {sT0}, {sT0}, {sT1}")
e(f"s_add_u32 {sT0}, {sT0}, {QG_G}")
e("v_and_b32 v2, 15, v0")
e("v_lshlrev_b32 v2, 4, v2")
e(f"v_lshl_add_u32 v1, v{vG}, 13, v2")
e(f"v_add_u32 v12, {sT0}, v1")
e("v_add_u32 v13, 0x8000, v12")
e(f"s_lshl_b32 {sT0}, {sRB}, 14")
e(f"s_lshl_b32 {sT1}, {sHI}, 11")
e(f"s_add_u32 {sT0}, {sT0}, {sT1}")
e(f"s_add_u32 {sT0}, {sT0}, {HG_G}")
e(f"v_lshl_add_u32 v14, v0, 4, {sT0}")
e(f"s_lshl_b32 {sT0}, s2, 7")
e(f"s_add_u32 {sT0}, {sT0}, {SG_G}")
e(f"v_lshl_add_u32 v15, v0, 4, {sT0}")
e("s_waitcnt lgkmcnt(0)")
e("s_barrier")
if QPRE:
    e(f"global_store_dwordx4 v12, {vr(24,4)}, {sWS}")
    e(f"global_store_dwordx4 v13, {vr(24,4)}, {sWS}")
    e(f"s_cmp_eq_u32 {sKVH}, 7")
    e("s_cbranch_scc1 L_nohpre")
    e(f"global_store_dwordx4 v14, {vr(24,4)}, {sWS}")
    e(f"global_store_dwordx4 v14, {vr(24,4)}, {sWS} offset:1024")
    lab("L_nohpre")
if OPRE:
    e(f"global_store_dwordx4 v10, {vr(24,4)}, {sWS}")
    e(f"global_store_dwordx4 v11, {vr(24,4)}, {sWS}")
e("s_mov_b64 exec, 0xff")
e(f"global_store_dwordx4 v15, {vr(24,4)}, {sWS}")
e("s_waitcnt vmcnt(0)")
arrive(F_S0)
ts(1)
c("warm L2: two lines of this kernel's code, the output page, the lines the final reduction will poll")
e(f"s_lshl_b32 {sT0}, {sR}, 8")
e(f"s_load_dword s72, s[38:39], {sT0}")
e(f"s_load_dword s73, s[38:39], {sT0} offset:128")
e(f"s_load_dword s74, {sOUT}, 0")
wait_flag("L_hwf", F_GO, 1, sleep=8)
if PRE_F:
    e(f"s_lshl_b32 {sT0}, {sHG}, 14")
    e(f"s_lshl_b32 {sT1}, {sHI}, 11")
    e(f"s_add_u32 {sT0}, {sT0}, {sT1}")
    e(f"s_add_u32 {sT0}, {sT0}, {FG_G}")
    for k in range(16):
        if k == 8: e("s_waitcnt lgkmcnt(0)")
        e(f"s_load_dword s{76+(k&7)}, {sWS}, {sT0} offset:{k*128}")
    e("s_waitcnt lgkmcnt(0)")
    ts(3)
e("s_mov_b64 exec, -1")
e("s_branch L_fin")

lab("L_c")
e(f"s_and_b32 {sCT}, {sW}, 3")
c("reducer output offset: b*512 + hg*16 + (l&3)*4 + (l>>4)")
e("v_and_b32 v1, 3, v0")
e(f"v_lshl_add_u32 v1, v1, 2, v{vG}")
e(f"s_lshl_b32 {sT0}, {sHI}, 9")
e(f"s_lshl_b32 {sT1}, {sHG}, 4")
e(f"s_add_u32 {sT0}, {sT0}, {sT1}")
e(f"v_add_lshl_u32 v{vRO}, v1, {sT0}, 1")
c("weight transpose-read address")
e("v_bfe_u32 v2, v0, 2, 2")
e(f"v_lshl_add_u32 v1, v{vG}, 3, v2")
e("v_bfe_u32 v2, v0, 3, 2")
e(f"v_xor_b32 v2, {sCT}, v2")
e("v_lshlrev_b32 v2, 5, v2")
e("v_lshl_add_u32 v1, v1, 7, v2")
e("v_and_b32 v2, 3, v0")
e("v_lshl_add_u32 v1, v2, 3, v1")
e(f"v_add_u32 v{vWT}, {W_L}, v1")
c("xn write addresses / masks, xn fragment address, publish address")
e(f"s_mul_i32 {sT0}, {sW}, {XN_S}")
e(f"s_add_u32 {sT0}, {sT0}, {XN_L}")
e("v_and_b32 v2, 15, v0")
e(f"v_lshl_add_u32 v10, v2, 4, {sT0}")
e("v_and_b32 v1, 7, v0")
e(f"v_lshl_add_u32 v11, v1, 4, {sT0}")
e(f"s_lshl_b32 {sT0}, {sLO}, 4")
e(f"s_lshl_b64 s[50:51], 0xffff, {sT0}")
e(f"s_lshl_b32 {sT0}, {sHI}, 3")
e(f"s_lshl_b64 s[52:53], 0xff, {sT0}")
e(f"s_lshl_b32 {sT0}, {sHG}, 1")
e(f"s_lshl_b64 s[56:57], 3, {sT0}")
e(f"v_mul_u32_u24 v12, {XN_S}, v1")
e(f"v_lshl_add_u32 v12, v{vG}, 4, v12")
e(f"v_add_u32 v12, {XN_L}, v12")
e("v_and_b32 v14, 1, v0")
e("v_lshlrev_b32 v14, 4, v14")
e(f"v_add_u32 v14, {XR_L}, v14")
e(f"s_lshl_b32 {sT2}, {sCT}, 6")
e(f"v_lshl_add_u32 v1, v{vG}, 4, {sT2}")
e(f"s_lshl_b32 {sT0}, {sKVH}, 16")
e(f"s_lshl_b32 {sT1}, {sLO}, 11")
e(f"s_add_u32 {sT0}, {sT0}, {sT1}")
e(f"s_lshl_b32 {sT1}, {sHI}, 8")
e(f"s_add_u32 {sT0}, {sT0}, {sT1}")
e(f"s_add_u32 {sT0}, {sT0}, {QG_G}")
e(f"s_lshl_b32 {sT2}, {sRB}, 14")
e(f"s_lshl_b32 {sT1}, {sHI}, 11")
e(f"s_add_u32 {sT2}, {sT2}, {sT1}")
e(f"s_add_u32 {sT2}, {sT2}, {HG_G}")
e(f"s_cmp_lt_u32 {sW}, 4")
e(f"s_cselect_b32 {sT0}, {sT0}, {sT2}")
e(f"s_cselect_b32 {sT1}, 13, 8")
e(f"v_lshlrev_b32 v13, {sT1}, v2")
e(f"v_add3_u32 v13, v13, v1, {sT0}")
e("s_barrier")
ts(1)
A, ra = 20, 28
e("s_waitcnt vmcnt(0)")
ts(2)
e(f"s_cmp_lg_u32 {sW}, {sHI}")
e("s_cbranch_scc1 L_noxr")
e("s_mov_b64 exec, s[56:57]")
e("ds_write_b128 v14, v[16:19]")
e("s_mov_b64 exec, -1")
lab("L_noxr")
for k in range(4):
    e(f"v_lshlrev_b32 v{A+2*k}, 16, v{16+k}")
    e(f"v_and_b32 v{A+2*k+1}, 0xffff0000, v{16+k}")
def wave_sum():
    for m in ("quad_perm:[1,0,3,2] row_mask:0xf bank_mask:0xf", "quad_perm:[2,3,0,1] row_mask:0xf bank_mask:0xf",
              "row_half_mirror row_mask:0xf bank_mask:0xf", "row_mirror row_mask:0xf bank_mask:0xf",
              "row_bcast:15 row_mask:0xa bank_mask:0xf", "row_bcast:31 row_mask:0xc bank_mask:0xf"):
        e("s_nop 1")
        e(f"v_add_f32_dpp v{ra}, v{ra}, v{ra} {m}")
    e(f"v_mul_f32 v{ra}, 0x3b000000, v{ra}")
e(f"v_add_f32 v{ra}, v{A}, v{A+1}")
e(f"v_add_f32 v29, v{A+2}, v{A+3}")
e(f"v_add_f32 v30, v{A+4}, v{A+5}")
e(f"v_add_f32 v31, v{A+6}, v{A+7}")
e(f"v_add_f32 v{ra}, v{ra}, v29")
e("v_add_f32 v30, v30, v31")
e(f"v_add_f32 v{ra}, v{ra}, v30")
wave_sum()
e(f"v_cvt_pk_bf16_f32 v29, v{ra}, v{ra}")
e(f"v_readlane_b32 {sT0}, v{ra}, 63")
e(f"v_readlane_b32 {sT2}, v29, 63")
e("s_nop 0")
for k in range(8): e(f"v_subrev_f32 v{32+k}, {sT0}, v{A+k}")
e(f"s_lshl_b32 {sT2}, {sT2}, 16")
e(f"v_mul_f32 v{ra}, v32, v32")
e("v_mul_f32 v29, v33, v33")
for k in range(2, 8, 2):
    e(f"v_fmac_f32 v{ra}, v{32+k}, v{32+k}")
    e(f"v_fmac_f32 v29, v{33+k}, v{33+k}")
e(f"v_add_f32 v{ra}, v{ra}, v29")
wave_sum()
round1(ra)
e(f"v_add_f32 v{ra}, 0x3727c5ac, v{ra}")
round1(ra)
e(f"v_sqrt_f32 v{ra}, v{ra}")
for k in range(8): e(f"v_subrev_f32 v{A+k}, {sT2}, v{A+k}")
round1(ra)
e(f"v_rcp_f32 v29, v{ra}")
for k in range(4): round2(A+2*k, A+2*k+1, 30 + (k & 1))
e(f"v_readlane_b32 {sT0}, v{ra}, 63")
e(f"v_readlane_b32 {sT4}, v29, 63")
e("s_nop 1")
for k in range(8): e(f"v_mul_f32 v{32+k}, {sT4}, v{A+k}")
for k in range(8): e(f"v_fma_f32 v{A+k}, -v{32+k}, {sT0}, v{A+k}")
for k in range(8): e(f"v_fma_f32 v{32+k}, v{A+k}, {sT4}, v{32+k}")
for k in range(4): e(f"v_cvt_pk_bf16_f32 v{16+k}, v{32+2*k}, v{33+2*k}")
e("s_mov_b64 exec, s[50:51]")
e("ds_write_b128 v10, v[16:19]")
e("s_mov_b64 exec, s[52:53]")
e("ds_write_b128 v11, v[16:19] offset:256")
arrive(F_S0)
e("s_waitcnt lgkmcnt(0)")
ts(3)
e(f"s_add_u32 {sEP}, {sEP}, 1")
e(f"s_and_b32 {sTAG}, {sEP}, 0xff")
e(f"s_cselect_b32 {sT0}, 0, 1")
e(f"s_add_u32 {sEP}, {sEP}, {sT0}")
e(f"s_add_u32 {sTAG}, {sTAG}, {sT0}")
e(f"s_mov_b32 {sMSK}, 0xffffff00")
e(f"v_mov_b32 v{vTAG}, {sTAG}")
c("q partials also carry the producer's XCC id, one bit per dword (bit 8)")
e(f"s_getreg_b32 {sT1}, hwreg(HW_REG_XCC_ID, 0, 4)")
for k, sx in enumerate(sXT):
    e(f"s_lshl_b32 {sx}, {sT1}, {8-k}")
    e(f"s_and_b32 {sx}, {sx}, 0x100")
    e(f"s_or_b32 {sx}, {sx}, {sTAG}")
e("v_mov_b32 v60, 0xfffffe00")
wait_flag("L_s0", F_S0, 10, sleep=1)
ts(5)
e(f"s_cmp_ge_u32 {sW}, 4")
e("s_cbranch_scc1 L_hproj")
for s in range(4):
    e(f"ds_read_b64_tr_b16 {vr(24+4*s,2)}, v{vWT} offset:{WA_O + s*4096}")
    e(f"ds_read_b64_tr_b16 {vr(26+4*s,2)}, v{vWT} offset:{WA_O + s*4096 + 512}")
    e(f"ds_read_b128 {vr(40+4*s,4)}, v12 offset:{s*64}")
for s in range(4):
    e(f"s_waitcnt lgkmcnt({9-3*s})")
    e(f"v_mfma_f32_16x16x32_bf16 {vr(20,4)}, {vr(24+4*s,4)}, {vr(40+4*s,4)}, " + ("0" if s == 0 else vr(20,4)))
e("s_mov_b32 exec_lo, 0x00ff00ff")
e("s_mov_b32 exec_hi, 0x00ff00ff")
e("s_nop 5")
for k, sx in enumerate(sXT):
    e(f"v_and_or_b32 v{20+k}, v{20+k}, v60, {sx}")
e("s_branch L_pub")
lab("L_hproj")
for s in range(2):
    e(f"ds_read_b64_tr_b16 {vr(24+4*s,2)}, v{vWT} offset:{WB_O + s*4096}")
    e(f"ds_read_b64_tr_b16 {vr(26+4*s,2)}, v{vWT} offset:{WB_O + s*4096 + 512}")
    e(f"ds_read_b128 {vr(40+4*s,4)}, v12 offset:{256 + s*64}")
for s in range(2):
    e(f"s_waitcnt lgkmcnt({3-3*s})")
    e(f"v_mfma_f32_16x16x32_bf16 {vr(20,4)}, {vr(24+4*s,4)}, {vr(40+4*s,4)}, " + ("0" if s == 0 else vr(20,4)))
e(f"s_cmp_eq_u32 {sKVH}, 7")
e("s_cbranch_scc1 L_pq_ok")
e("s_mov_b32 exec_lo, 0x00ff00ff")
e("s_mov_b32 exec_hi, 0x00ff00ff")
e("s_nop 5")
tag4(20)
lab("L_pub")
if not NOPUB: e(f"global_store_dwordx4 v13, {vr(20,4)}, {sWS}" + {0: " sc1", 1: "", 2: " sc1 nt", 3: " nt"}[QPLAIN])
lab("L_pq_ok")
arrive(F_WF)
ts(6)
e("v_and_b32 v2, 15, v0")
e(f"v_lshlrev_b32 v1, 11, v{vG}")
e("v_lshl_add_u32 v1, v2, 4, v1")
e(f"s_lshl_b32 {sT0}, {sKVH}, 16")
e(f"s_lshl_b32 {sT1}, {sHI}, 13")
e(f"s_add_u32 {sT0}, {sT0}, {sT1}")
e(f"s_lshl_b32 {sT1}, {sW}, 8")
e(f"s_add_u32 {sT0}, {sT0}, {sT1}")
e(f"s_add_u32 {sT0}, {sT0}, {QG_G}")
e(f"v_add_u32 v10, {sT0}, v1")
e(f"s_lshl_b32 {sT0}, {sRB}, 14")
e(f"s_add_u32 {sT0}, {sT0}, {sT1}")
e(f"s_add_u32 {sT0}, {sT0}, {HG_G}")
e(f"v_add_u32 v11, {sT0}, v1")
e("v_add_u32 v12, 0x2000, v11")
e(f"v_lshlrev_b32 v1, 1, v{vG}")
e("v_lshl_add_u32 v1, v2, 3, v1")
e(f"s_lshr_b32 {sT0}, {sW}, 1")
e(f"s_mul_i32 {sT0}, {sT0}, {QL_S}")
e(f"s_and_b32 {sT1}, {sW}, 1")
e(f"s_lshl_b32 {sT1}, {sT1}, 7")
e(f"s_add_u32 {sT0}, {sT0}, {sT1}")
e(f"s_add_u32 {sT0}, {sT0}, {QL_L}")
e(f"v_add_u32 v13, {sT0}, v1")
e(f"s_mul_i32 {sT0}, {sW}, {HL_S}")
e(f"s_add_u32 {sT0}, {sT0}, {HL_L}")
e(f"v_add_u32 v16, {sT0}, v1")
e(f"v_xor_b32 v1, v{vG}, v2")
e("v_lshlrev_b32 v1, 4, v1")
e("v_lshl_add_u32 v1, v2, 8, v1")
e(f"s_lshl_b32 {sT0}, {sW}, 13")
e(f"v_add_u32 v20, {sT0}, v1")
e("v_xor_b32 v21, 64, v20")
e("v_xor_b32 v22, 128, v20")
e("v_xor_b32 v23, 192, v20")
e("v_and_b32 v1, 3, v0")
e(f"v_mul_u32_u24 v17, {QL_S}, v1")
e(f"v_lshl_add_u32 v17, v{vG}, 4, v17")
e(f"v_add_u32 v17, {QL_L}, v17")
e("v_lshlrev_b32 v18, 5, v1")
e(f"v_add_u32 v18, {MX_L}, v18")
e(f"s_lshl_b32 {sT0}, {sW}, 2")
e(f"v_add_u32 v19, {sT0}, v18")
e(f"v_mul_u32_u24 v2, {PL_S}, v1")
e(f"v_lshl_add_u32 v{vFP}, v{vG}, 4, v2")
e(f"v_add_u32 v{vFP}, {PL_L}, v{vFP}")
e("v_lshrrev_b32 v1, 2, v0")
e("v_lshl_add_u32 v2, v1, 1, v2")
e(f"s_lshl_b32 {sT0}, {sW}, 6")
e(f"s_add_u32 {sT0}, {sT0}, {PL_L}")
e(f"v_add_u32 v119, {sT0}, v2")
e(f"s_mov_b32 {sSPIN}, 0")
wait_flag("L_gp", F_GO, 1, sleep=2)
ts(7)
GFL = {0: " sc1", 1: " nt", 2: "", 3: " sc0 sc1", 4: " sc1 nt"}[opt("gfl", 0)]
def q_loads(): e(f"global_load_dwordx4 {vr(24,4)}, v10, {sWS}" + GFL)
def h_loads():
    e(f"global_load_dwordx4 {vr(28,4)}, v11, {sWS}" + GFL)
    e(f"global_load_dwordx4 {vr(32,4)}, v12, {sWS}" + GFL)
if not NOGQ: poll("L_q", q_loads, [24,25,26,27], 36, SLP_Q, issued=False, tags=sXT)
else:
    if NOGQ == 2:
        e("v_and_b32 v10, 0x1ff0, v10")
        e(f"global_load_dwordx4 {vr(24,4)}, v10, {sX} sc1")
        e("s_waitcnt vmcnt(0)")
    if NOGQ == 3:
        e("s_sleep 40")
    for k in range(4): e(f"v_mov_b32 v{24+k}, 0")
if PROFILE: e(f"v_writelane_b32 v{vTS}, {sSPIN}, 23")
e(f"s_cmp_eq_u32 {sKVH}, 7")
e("s_cbranch_scc1 L_nohl")
if not NOGH: h_loads()
lab("L_nohl")
e("v_or3_b32 v36, v24, v25, v26")
e("v_or_b32 v36, v36, v27")
e("v_and_b32 v36, 0x100, v36")
e("v_cmp_ne_u32 vcc, 0, v36")
for k in range(4): e(f"v_and_b32 v{24+k}, v60, v{24+k}")
e("s_cmp_lg_u64 vcc, 0")
e(f"s_cselect_b32 {sT1}, 0x10001, 1")
e(f"v_mov_b32 v36, {sT1}")
fold4(24)
e("v_cvt_pk_bf16_f32 v24, v24, v24")
e("ds_write_b16 v13, v24")
e("s_mov_b64 exec, 1")
e(f"ds_add_u32 v{vFL}, v36 offset:{F_S1}")
e("s_mov_b64 exec, -1")
ts(8)
KF, QF = 40, 72
wait_flag("L_kl", F_KL, 1, sleep=2)
for t in range(2):
    for s in range(4):
        e(f"ds_read_b128 {vr(KF+16*t+4*s,4)}, v{20+s} offset:{t*4096}")
lab("L_s1")
e(f"ds_read_b32 v1, v{vFL} offset:{F_S1}")
e("s_waitcnt lgkmcnt(0)")
e(f"v_readfirstlane_b32 {sFAST}, v1")
e(f"s_and_b32 {sT0}, {sFAST}, 0xffff")
e(f"s_cmp_lt_u32 {sT0}, 8")
e("s_cbranch_scc1 L_s1")
e(f"s_lshr_b32 {sFAST}, {sFAST}, 16")
ts(9)
for s in range(4): e(f"ds_read_b128 {vr(QF+4*s,4)}, v17 offset:{s*64}")
for s in range(4):
    e(f"s_waitcnt lgkmcnt({3-s})")
    for t in range(2):
        e(f"v_mfma_f32_16x16x32_bf16 {vr(88+4*t,4)}, {vr(KF+16*t+4*s,4)}, {vr(QF+4*s,4)}, " + ("0" if s == 0 else vr(88+4*t,4)))
e("s_nop 7")
for k in range(1, 4):
    e(f"v_mov_b32_dpp v88, v{88+k} quad_perm:[0,1,2,3] row_mask:0xf bank_mask:{1<<k:#x}")
    e(f"v_mov_b32_dpp v92, v{92+k} quad_perm:[0,1,2,3] row_mask:0xf bank_mask:{1<<k:#x}")
    if k < 3: e("s_nop 0")
c("scores: bf16(bf16(qk) * scale)")
round2(88, 92, 89)
e("v_mul_f32 v88, 0x3db504f3, v88")
e("v_mul_f32 v92, 0x3db504f3, v92")
round2(88, 92, 89)
e("v_max_f32 v90, v88, v92")
e("s_nop 1")
e("v_max_f32_dpp v90, v90, v90 row_ror:4 row_mask:0xf bank_mask:0xf")
e("s_nop 1")
e("v_max_f32_dpp v90, v90, v90 row_ror:8 row_mask:0xf bank_mask:0xf")
e("v_mov_b32 v91, v90")
e("s_nop 1")
e("v_permlane16_swap_b32 v90, v91")
e("v_max_f32 v90, v90, v91")
e("v_mov_b32 v91, v90")
e("s_nop 1")
e("v_permlane32_swap_b32 v90, v91")
e("v_max_f32 v90, v90, v91")
e("s_mov_b64 exec, 15")
e("ds_write_b32 v19, v90")
arrive(F_S2)
ts(10)
wait_flag("L_s2", F_S2, 8)
e(f"ds_read_b128 {vr(96,4)}, v18")
e(f"ds_read_b128 {vr(100,4)}, v18 offset:16")
e("s_waitcnt lgkmcnt(0)")
e("v_max3_f32 v96, v96, v97, v98")
e("v_max3_f32 v100, v100, v101, v102")
e("v_max3_f32 v96, v96, v99, v103")
e("v_max_f32 v96, v96, v100")
e("v_sub_f32 v88, v88, v96")
e("v_sub_f32 v92, v92, v96")
e(f"v_mul_f32 v88, {LOG2E}, v88")
e(f"v_mul_f32 v92, {LOG2E}, v92")
e("v_exp_f32 v88, v88")
e("v_exp_f32 v92, v92")
e("s_nop 0")
e("v_cvt_pk_bf16_f32 v88, v88, v92")
e("ds_write_b16 v119, v88")
e("ds_write_b16_d16_hi v119, v88 offset:32")
arrive(F_S3)
ts(11)
PF, VF, OD = 40, 72, 104
c("addresses: V transpose read, o publish, o gather, stats, o LDS write, fragments, final publish / gather")
e("v_and_b32 v1, 3, v0")
e("v_bfe_u32 v2, v0, 2, 2")
e(f"v_lshl_add_u32 v2, v{vG}, 3, v2")
e("v_bfe_u32 v10, v0, 2, 3")
e(f"v_xor_b32 v10, {sW}, v10")
e("v_lshlrev_b32 v10, 5, v10")
e("v_lshl_add_u32 v10, v2, 8, v10")
e("v_lshl_add_u32 v10, v1, 3, v10")
e(f"v_add_u32 v10, {V_L}, v10")
e(f"s_lshl_b32 {sT0}, s2, 7")
e(f"s_add_u32 {sT0}, {sT0}, {SG_G}")
e(f"v_lshl_add_u32 v14, v1, 4, {sT0}")
wait_flag("L_s3", F_S3, 8)
ts(12)
for t in range(8):
    e(f"ds_read_b128 {vr(PF+4*t,4)}, v{vFP} offset:{t*64}")
e(f"s_cmp_lg_u32 {sW}, 7")
e("s_cbranch_scc1 L_nostats")
c("wave 7: row sums of P by MFMA with ones, publish (m, l)")
for k in range(4): e(f"v_mov_b32 v{20+k}, 0x3f803f80")
e("s_waitcnt lgkmcnt(0)")
for t in range(8):
    e(f"v_mfma_f32_16x16x32_bf16 {vr(108,4)}, {vr(20,4)}, {vr(PF+4*t,4)}, " + ("0" if t == 0 else vr(108,4)))
e("v_mov_b32 v24, v96")
e("v_mov_b32 v26, v96")
e("s_mov_b64 exec, 15")
e("s_nop 4")
e("v_mov_b32 v25, v108")
e("v_mov_b32 v27, v108")
tag4(24)
pub("L_ps", 14, 24, OPLAIN)
e("s_mov_b64 exec, -1")
lab("L_nostats")
c("h: finish the gather, silu")
e(f"s_cmp_eq_u32 {sKVH}, 7")
e("s_cbranch_scc1 L_hdone")
if not NOGH: poll("L_h", h_loads, list(range(28, 36)), 36, SLP_Q)
for k in range(4): e(f"v_add_f32 v{28+k}, v{28+k}, v{32+k}")
fold4(28)
round1(28)
e("v_mul_f32 v29, 0xbfb8aa3b, v28")
e("v_exp_f32 v29, v29")
e("s_nop 0")
e("v_add_f32 v29, 1.0, v29")
e("v_rcp_f32 v29, v29")
e("s_nop 0")
e("v_mul_f32 v28, v28, v29")
e("v_cvt_pk_bf16_f32 v28, v28, v28")
e("ds_write_b16 v16, v28")
lab("L_hdone")
e("v_and_b32 v1, 3, v0")
e(f"s_lshl_b32 {sT0}, {sKVH}, 16")
e(f"s_lshl_b32 {sT1}, {sR}, 9")
e(f"s_add_u32 {sT0}, {sT0}, {sT1}")
e(f"s_lshl_b32 {sT1}, {sW}, 6")
e(f"s_add_u32 {sT0}, {sT0}, {sT1}")
e(f"s_add_u32 {sT0}, {sT0}, {OG_G}")
e("v_lshlrev_b32 v2, 14, v1")
e(f"v_lshl_add_u32 v2, v{vG}, 4, v2")
e(f"v_add_u32 v11, {sT0}, v2")
e(f"s_lshl_b32 {sT0}, {sHG}, 14")
e(f"s_lshl_b32 {sT2}, {sW}, 11")
e(f"s_add_u32 {sT0}, {sT0}, {sT2}")
e(f"s_add_u32 {sT0}, {sT0}, {OG_G}")
e(f"v_lshl_add_u32 v12, v0, 4, {sT0}")
e("v_and_b32 v2, 31, v0")
e("v_lshrrev_b32 v15, 5, v0")
e("v_lshlrev_b32 v15, 2, v15")
e("v_lshl_add_u32 v15, v2, 3, v15")
e(f"s_mul_i32 {sT0}, {sW}, {OL_S}")
e(f"v_add_u32 v15, {sT0}, v15")
e("v_and_b32 v1, 7, v0")
e(f"v_mul_u32_u24 v16, {HL_S}, v1")
e(f"v_lshl_add_u32 v16, v{vG}, 4, v16")
e(f"v_add_u32 v16, {HL_L}, v16")
e(f"v_mul_u32_u24 v17, {OL_S}, v1")
e(f"v_lshl_add_u32 v17, v{vG}, 4, v17")
e(f"s_lshl_b32 {sT0}, {sHI}, 2")
e(f"s_add_u32 {sT0}, {sT0}, {sCT}")
e(f"s_lshl_b32 {sT0}, {sT0}, 14")
e(f"s_lshl_b32 {sT1}, {sHG}, 6")
e(f"s_add_u32 {sT0}, {sT0}, {sT1}")
e(f"s_add_u32 {sT0}, {sT0}, {FG_G}")
e("v_lshlrev_b32 v18, 11, v1")
e(f"v_lshl_add_u32 v18, v{vG}, 4, v18")
e(f"v_add_u32 v18, {sT0}, v18")
e(f"s_lshl_b32 {sT0}, {sHG}, 14")
e(f"s_lshl_b32 {sT1}, {sHI}, 11")
e(f"s_add_u32 {sT0}, {sT0}, {sT1}")
e(f"s_add_u32 {sT0}, {sT0}, {FG_G}")
e(f"v_lshl_add_u32 v19, v0, 4, {sT0}")
e(f"s_lshl_b32 {sT5}, {sW}, 12")
e(f"s_lshl_b32 {sT1}, {sKVH}, 7")
e(f"s_add_u32 {sT5}, {sT5}, {sT1}")
e(f"s_lshl_b32 {sT1}, {sLO}, 4")
e(f"s_add_u32 {sT5}, {sT5}, {sT1}")
def pv(tiles, first):
    for n, t in enumerate(tiles):
        e(f"ds_read_b64_tr_b16 {vr(VF+4*n,2)}, v10 offset:{t*8192}")
        e(f"ds_read_b64_tr_b16 {vr(VF+4*n+2,2)}, v10 offset:{t*8192+1024}")
    for n, t in enumerate(tiles):
        e(f"s_waitcnt lgkmcnt({2*(len(tiles)-1-n)})")
        e(f"v_mfma_f32_16x16x32_bf16 {vr(OD,4)}, {vr(VF+4*n,4)}, {vr(PF+4*t,4)}, " + ("0" if first and n == 0 else vr(OD,4)))
wait_flag("L_v5", F_V5, 1, sleep=2)
ts(13)
pv([0,1,2,3,4,5], True)
wait_flag("L_v6", F_V6, 1, sleep=1)
pv([6], False)
ST = 72
def st_loads():
    for k in range(4): e(f"s_load_dwordx4 s[{ST+4*k}:{ST+4*k+3}], {sWS}, {sT5} offset:{SG_G + k*1024} glc")
e("s_barrier")
ts(14)
pv([7], False)
st_loads()
e("s_mov_b32 exec_lo, 0x000f000f")
e("s_mov_b32 exec_hi, 0x000f000f")
e("s_nop 1")
tag4(OD)
pub("L_po", 11, OD, OPLAIN)
e("s_mov_b64 exec, -1")
if PROFILE: ts(15)
c("stats of the four chunks of batch w: {m, l, m, l} + tags, read through the scalar path")
e("s_branch L_st_chk")
lab("L_st_poll")
e(f"s_sleep {SLP_O}")
st_loads()
lab("L_st_chk")
e("s_waitcnt lgkmcnt(0)")
for k in range(4):
    e(f"s_xor_b64 s[{ST+4*k+2}:{ST+4*k+3}], s[{ST+4*k+2}:{ST+4*k+3}], s[{ST+4*k}:{ST+4*k+1}]")
    e(f"s_xor_b32 s{ST+4*k}, s{ST+4*k}, {sTAG}")
    e(f"s_xor_b32 s{ST+4*k+1}, s{ST+4*k+1}, {sTAG}")
e(f"s_or_b64 s[{AN}:{AN+1}], s[{ST}:{ST+1}], s[{ST+4}:{ST+5}]")
e(f"s_or_b64 s[{AN+2}:{AN+3}], s[{ST+8}:{ST+9}], s[{ST+12}:{ST+13}]")
e(f"s_or_b64 s[{AN}:{AN+1}], s[{AN}:{AN+1}], s[{AN+2}:{AN+3}]")
e(f"s_or_b32 s{AN}, s{AN}, s{AN+1}")
e(f"s_and_b32 s{AN}, s{AN}, 0xff")
e(f"s_or_b64 s[{AN+2}:{AN+3}], s[{ST+2}:{ST+3}], s[{ST+6}:{ST+7}]")
e(f"s_or_b64 s[{AN+4}:{AN+5}], s[{ST+10}:{ST+11}], s[{ST+14}:{ST+15}]")
e(f"s_or_b64 s[{AN+2}:{AN+3}], s[{AN+2}:{AN+3}], s[{AN+4}:{AN+5}]")
e(f"s_or_b32 s{AN}, s{AN}, s{AN+2}")
e(f"s_or_b32 s{AN}, s{AN}, s{AN+3}")
e("s_cbranch_scc0 L_st_done")
e(f"s_add_u32 {sSPIN}, {sSPIN}, 1")
e(f"s_cmp_le_u32 {sSPIN}, {SPIN_MAX}")
e("s_cbranch_scc1 L_st_poll")
lab("L_st_done")
def o_loads():
    e(f"global_load_dwordx4 {vr(24,4)}, v12, {sWS} sc1" + ONT)
    e(f"global_load_dwordx4 {vr(28,4)}, v12, {sWS} offset:1024 sc1" + ONT)
o_loads()
c("alpha[c] = exp(m_c - m) / sum_c(l_c exp(m_c - m))")
for k in range(4): e(f"v_mov_b32 v{32+k}, s{ST+4*k}")
e("v_max3_f32 v20, v32, v33, v34")
e("v_max_f32 v20, v20, v35")
for k in range(4): e(f"v_sub_f32 v{32+k}, v{32+k}, v20")
for k in range(4): e(f"v_mul_f32 v{32+k}, {LOG2E}, v{32+k}")
for k in range(4): e(f"v_exp_f32 v{32+k}, v{32+k}")
e(f"v_mul_f32 v20, s{ST+1}, v32")
e(f"v_mul_f32 v21, s{ST+5}, v33")
e(f"v_fmac_f32 v20, s{ST+9}, v34")
e(f"v_fmac_f32 v21, s{ST+13}, v35")
e("v_add_f32 v20, v20, v21")
e("v_rcp_f32 v20, v20")
e("s_mov_b32 exec_lo, 0")
e("v_mov_b32 v32, v33")
e("v_mov_b32 v34, v35")
e("s_mov_b32 exec_lo, -1")
e("v_mul_f32 v22, v32, v20")
e("v_mul_f32 v23, v34, v20")
ts(16)
e("s_barrier")
ts(17)
WF, W2F, HF, FD = 40, 56, 64, 108
e(f"s_cmp_ge_u32 {sW}, 4")
e("s_cbranch_scc1 L_nowf")
for s in range(2):
    e(f"ds_read_b64_tr_b16 {vr(W2F+4*s,2)}, v{vWT} offset:{WB_O + s*4096}")
    e(f"ds_read_b64_tr_b16 {vr(W2F+4*s+2,2)}, v{vWT} offset:{WB_O + s*4096 + 512}")
e(f"ds_read_b128 {vr(HF,4)}, v16")
e(f"ds_read_b128 {vr(HF+4,4)}, v16 offset:64")
for s in range(4):
    e(f"ds_read_b64_tr_b16 {vr(WF+4*s,2)}, v{vWT} offset:{WA_O + s*4096}")
    e(f"ds_read_b64_tr_b16 {vr(WF+4*s+2,2)}, v{vWT} offset:{WA_O + s*4096 + 512}")
for k in range(4): e(f"v_mov_b32 v{FD+k}, 0")
lab("L_nowf")
poll("L_o", o_loads, list(range(24, 32)), 36, SLP_O)
ts(18)
for k in range(4): e(f"v_mul_f32 v{24+k}, v22, v{24+k}")
for k in range(4): e(f"v_fmac_f32 v{24+k}, v23, v{28+k}")
e("s_nop 1")
e("v_permlane32_swap_b32 v24, v26")
e("v_permlane32_swap_b32 v25, v27")
e("v_add_f32 v24, v24, v26")
e("v_add_f32 v25, v25, v27")
e("v_cvt_pk_bf16_f32 v24, v24, v25")
e("ds_write_b32 v15, v24")
e("s_waitcnt lgkmcnt(0)")
e("s_barrier")
ts(19)
e(f"s_cmp_ge_u32 {sW}, 4")
e("s_cbranch_scc1 L_red")
OF = 72
for s in range(4): e(f"ds_read_b128 {vr(OF+4*s,4)}, v17 offset:{s*64}")
e(f"s_cmp_eq_u32 {sKVH}, 7")
e("s_cbranch_scc1 L_noffn")
e(f"v_mfma_f32_16x16x32_bf16 {vr(FD,4)}, {vr(W2F,4)}, {vr(HF,4)}, 0")
e(f"v_mfma_f32_16x16x32_bf16 {vr(FD,4)}, {vr(W2F+4,4)}, {vr(HF+4,4)}, {vr(FD,4)}")
lab("L_noffn")
for s in range(4):
    e(f"s_waitcnt lgkmcnt({3-s})")
    e(f"v_mfma_f32_16x16x32_bf16 {vr(FD,4)}, {vr(WF+4*s,4)}, {vr(OF+4*s,4)}, {vr(FD,4)}")
e("s_mov_b32 exec_lo, 0x00ff00ff")
e("s_mov_b32 exec_hi, 0x00ff00ff")
e("s_nop 5")
tag4(FD)
e(f"global_store_dwordx4 v18, {vr(FD,4)}, {sWS} sc1")
e("s_mov_b64 exec, -1")
ts(20)
e("s_branch L_fin")
lab("L_red")
e(f"s_cmp_lg_u32 {sW}, 4")
e("s_cbranch_scc1 L_fin")
c("reducer (b = hi, column tile = hg)")
e(f"v_and_b32 v1, 31, v{vRO}")
e(f"v_add_u32 v1, {XR_L}, v1")
e("ds_read_u16 v2, v1")
def f_loads():
    e(f"global_load_dwordx4 {vr(24,4)}, v19, {sWS} sc1" + FNT)
    e(f"global_load_dwordx4 {vr(28,4)}, v19, {sWS} offset:1024 sc1" + FNT)
e("s_waitcnt lgkmcnt(0)")
e("v_lshlrev_b32 v2, 16, v2")
poll("L_f", f_loads, list(range(24, 32)), 36, SLP_F, issued=False)
ts(21)
for k in range(4): e(f"v_add_f32 v{24+k}, v{24+k}, v{28+k}")
fold4(24)
e("s_nop 1")
e("v_add_f32_dpp v24, v24, v24 row_ror:4 row_mask:0xf bank_mask:0xf")
e("s_nop 1")
e("v_add_f32_dpp v24, v24, v24 row_ror:8 row_mask:0xf bank_mask:0xf")
e("v_add_f32 v24, v24, v2")
e("v_cvt_pk_bf16_f32 v24, v24, v24")
e("s_mov_b32 exec_lo, 0x000f000f")
e("s_mov_b32 exec_hi, 0x000f000f")
e(f"global_store_short v{vRO}, v24, {sOUT}")
e("s_cmp_lg_u32 s2, 0")
e("s_cbranch_scc1 L_fin0")
c("workgroup 0 has (transitively) heard from every workgroup: advance the epoch")
e("s_mov_b64 exec, 1")
e(f"v_mov_b32 v1, {EP_G}")
e(f"v_mov_b32 v2, {sEP}")
e(f"global_store_dword v1, v2, {sWS}")
lab("L_fin0")
e("s_mov_b64 exec, -1")
ts(22)
lab("L_fin")
ts_flush()
lab("L_end")
e("s_endpgm")
L.append(f""".section .rodata,"a"
.p2align 6
.amdhsa_kernel {NAME}_kernel
  .amdhsa_next_free_vgpr 128
  .amdhsa_next_free_sgpr 96
  .amdhsa_accum_offset 128
  .amdhsa_group_segment_fixed_size 0
  .amdhsa_kernarg_size 88
  .amdhsa_user_sgpr_count 2
  .amdhsa_user_sgpr_kernarg_segment_ptr 1
  .amdhsa_system_sgpr_workgroup_id_x 1
  .amdhsa_float_denorm_mode_32 3
.end_amdhsa_kernel""")
open(OUT, "w").write("\n".join(L) + "\n")
```

```python
import sys
NAME = "parallel_sum__sliding_block_cached__dense_activation_silu__decode"
opts = dict(a.split("=") for a in sys.argv[2:])
OUT = sys.argv[1] if len(sys.argv) > 1 else f"cdna_kernels/{NAME}.s"
def opt(k, d): return int(opts.get(k, d))
PROFILE = opt("prof", 0)
NK, NV, NL, SW = opt("nk", 24), opt("nv", 24), opt("nl", 24), opt("sw", 32)
GP = opt("gp", 14)
SLP_Q, SLP_O, SLP_F = opt("slq", 4), opt("slo", 1), opt("slf", 1)
PRE_F, QPLAIN, OPLAIN = opt("pref", 1), opt("qplain", 0), opt("oplain", 1)
QPRE = opt("qpre", 1)
NOPUB, NOGQ, NOGH, OPRE = opt("nopub", 0), opt("nogq", 0), opt("nogh", 0), opt("opre", 1)
ONT = " nt" if opt("ont", 0) else ""
FNT = " nt" if opt("fnt", 0) else ""
NWAVES = 10

L = []
def e(s): L.append("    " + s)
def lab(s): L.append(s + ":")
def c(s): L.append("    ; " + s)
def vr(a, n): return f"v[{a}:{a+n-1}]"

K_L, V_L, W_L = 0, 65536, 131072
WA_O, WB_O = 0, 16384
M_L = 155648
QL_L, QL_S = M_L, 288
PL_L, PL_S = QL_L + 4*288, 544
HL_L, HL_S = PL_L + 4*544, 160
MX_L = HL_L + 8*160
FL_L = MX_L + 128
XN_L, XN_S = FL_L + 64, 416
XR_L = XN_L + 8*XN_S
OL_L, OL_S = K_L, 288
LDS_BYTES = 163840
assert XR_L + 32 <= LDS_BYTES
F_GO, F_S0, F_WF, F_S1, F_S2, F_S3, F_KL, F_V5, F_V6 = 0, 4, 8, 12, 16, 20, 24, 28, 32
EP_G = 0
SG_G = 0x8000
QG_G = 0x10000
HG_G = QG_G + 0x80000
OG_G = HG_G + 0x70000
FG_G = OG_G + 0x80000
TS_G = 0x400000
assert FG_G + 0x80000 <= 0x200000
sX, sK, sV, sWQ, sWO, sW1, sW2, sOUT, sDBG, sWS = "s[4:5]", "s[6:7]", "s[8:9]", "s[10:11]", "s[12:13]", "s[16:17]", "s[18:19]", "s[20:21]", "s[22:23]", "s[24:25]"
sKVH, sR, sHI, sLO, sW, sEP, sTAG, sHG, sRB, sT0, sMSK, sSPIN = "s26", "s27", "s28", "s29", "s30", "s31", "s32", "s33", "s34", "s35", "s36", "s37"
sT1, sT2, sT3, sT4, sT5, sCT = "s42", "s43", "s44", "s45", "s46", "s47"
sFAST, sXC, sDO = "s54", "s55", "s3"
sXT = ["s60", "s61", "s62", "s63"]
AN = 64
SPIN_MAX = 1 << 18
LOG2E = "0x3fb8aa3b"
vTS = 120
def ts(k):
    if PROFILE:
        e("s_memrealtime s[40:41]")
        e("s_waitcnt lgkmcnt(0)")
        e(f"v_writelane_b32 v{vTS}, s40, {k}")
DBG = opt("dbg", 0)
def dbg_loader():
    if DBG:
        e(f"v_lshl_add_u32 v1, v0, 2, v{vFL}")
        e(f"ds_write_b32 v1, v{vTS} offset:64")
        e("s_waitcnt lgkmcnt(0)")
def dbg_out():
    if DBG:
        e(f"v_lshl_add_u32 v1, v0, 2, v{vFL}")
        e("ds_read_b32 v2, v1 offset:64")
        e("s_waitcnt lgkmcnt(0)")
        e("v_mov_b32 v3, 0")
        e("s_not_b32 s49, s48")
        e("v_writelane_b32 v3, s49, 0")
        e("v_writelane_b32 v3, s48, 1")
        for slot, k in enumerate((2, 5, 6, 8, 12, 14, 17, 19, 22)):
            e(f"v_readlane_b32 s49, v{vTS}, {k}")
            e("s_nop 3")
            e(f"v_writelane_b32 v3, s49, {2+slot}")
        for slot, k in enumerate((7, 1, 2, 3, 5)):
            e(f"v_readlane_b32 s49, v2, {k}")
            e("s_nop 3")
            e(f"v_writelane_b32 v3, s49, {11+slot}")
        e("v_lshlrev_b32 v1, 2, v0")
        e("s_mov_b64 exec, 0xffff")
        e(f"global_atomic_umax v1, v3, {sDBG}")
def ts_flush():
    if PROFILE and not DBG:
        e(f"v_writelane_b32 v{vTS}, s48, 0")
        e("s_mov_b64 exec, 0xffffff")
        e(f"s_mul_i32 {sT0}, s2, {NWAVES}")
        e(f"s_add_u32 {sT0}, {sT0}, {sW}")
        e(f"s_lshl_b32 {sT0}, {sT0}, 7")
        e(f"s_add_u32 {sT0}, {sT0}, {TS_G}")
        e(f"v_lshl_add_u32 v{vTS+1}, v0, 2, {sT0}")
        e(f"global_store_dword v{vTS+1}, v{vTS}, {sWS}")

vTAG, vWT, vFL, vONE, vG = 6, 7, 8, 9, 3
vRO, vFP = 117, 118

def tag4(r):
    for k in range(4):
        e(f"v_and_or_b32 v{r+k}, v{r+k}, {sMSK}, v{vTAG}")
def pub(name, addr, r, allow_plain):
    if allow_plain:
        e(f"s_cmp_lg_u32 {sFAST}, 0")
        e(f"s_cbranch_scc1 {name}_wt")
        e(f"global_store_dwordx4 v{addr}, {vr(r,4)}, {sWS}")
        e(f"s_branch {name}_ok")
        lab(f"{name}_wt")
    e(f"global_store_dwordx4 v{addr}, {vr(r,4)}, {sWS} sc1")
    lab(f"{name}_ok")
def an_load(): e(f"s_load_dwordx8 s[{AN}:{AN+7}], {sDBG}, {sDO} glc")
def an_diff(dst, want, mask):
    for k in range(8): e(f"s_xor_b32 s{AN+k}, s{AN+k}, {want}")
    e(f"s_or_b64 s[{AN}:{AN+1}], s[{AN}:{AN+1}], s[{AN+2}:{AN+3}]")
    e(f"s_or_b64 s[{AN+4}:{AN+5}], s[{AN+4}:{AN+5}], s[{AN+6}:{AN+7}]")
    e(f"s_or_b64 s[{AN}:{AN+1}], s[{AN}:{AN+1}], s[{AN+4}:{AN+5}]")
    e(f"s_or_b32 {dst}, s{AN}, s{AN+1}")
    e(f"s_and_b32 {dst}, {dst}, {mask}")
def arrive(f):
    e("s_mov_b64 exec, 1")
    e(f"ds_add_u32 v{vFL}, v{vONE} offset:{f}")
    e("s_mov_b64 exec, -1")
def wait_flag(name, f, thr, sleep=0):
    if sleep:
        e(f"s_branch {name}")
        lab(name + "_z")
        e(f"s_sleep {sleep}")
    lab(name)
    e(f"ds_read_b32 v1, v{vFL} offset:{f}")
    e("s_waitcnt lgkmcnt(0)")
    e(f"v_readfirstlane_b32 {sT0}, v1")
    e(f"s_cmp_lt_u32 {sT0}, {thr}")
    e(f"s_cbranch_scc1 {name}" + ("_z" if sleep else ""))
def poll(name, loads, regs, tmp, sleep, issued=True, tags=None):
    if issued: e(f"s_branch {name}_chk")
    lab(f"{name}_poll")
    loads()
    lab(f"{name}_chk")
    e("s_waitcnt vmcnt(0)")
    for n, r in enumerate(regs): e(f"v_xor_b32 v{r}, {tags[n] if tags else sTAG}, v{r}")
    e(f"v_or3_b32 v{tmp}, v{regs[0]}, v{regs[1]}, v{regs[2]}")
    rest = regs[3:]
    while len(rest) >= 2:
        e(f"v_or3_b32 v{tmp}, v{tmp}, v{rest[0]}, v{rest[1]}"); rest = rest[2:]
    if rest: e(f"v_or_b32 v{tmp}, v{tmp}, v{rest[0]}")
    e(f"v_and_b32 v{tmp}, 0xff, v{tmp}")
    e(f"s_add_u32 {sSPIN}, {sSPIN}, 1")
    e(f"s_cmp_gt_u32 {sSPIN}, {SPIN_MAX}")
    e(f"v_or_b32_dpp v{tmp}, v{tmp}, v{tmp} quad_perm:[1,0,3,2] row_mask:0xf bank_mask:0xf")
    e(f"s_cbranch_scc1 {name}_done")
    e("s_nop 0")
    e(f"v_or_b32_dpp v{tmp}, v{tmp}, v{tmp} quad_perm:[2,3,0,1] row_mask:0xf bank_mask:0xf")
    e(f"v_cmp_ne_u32 vcc, 0, v{tmp}")
    e(f"s_cbranch_vccz {name}_done")
    e("s_mov_b64 exec, vcc")
    if sleep: e(f"s_sleep {sleep}")
    e(f"s_branch {name}_poll")
    lab(f"{name}_done")
    e("s_mov_b64 exec, -1")
def round2(a, b, t):
    e(f"v_cvt_pk_bf16_f32 v{t}, v{a}, v{b}")
    e(f"v_lshlrev_b32 v{a}, 16, v{t}")
    e(f"v_and_b32 v{b}, 0xffff0000, v{t}")
def round1(a):
    e(f"v_cvt_pk_bf16_f32 v{a}, v{a}, v{a}")
    e(f"v_lshlrev_b32 v{a}, 16, v{a}")
def fold4(r):
    e("s_nop 1")
    e(f"v_permlane32_swap_b32 v{r}, v{r+2}")
    e(f"v_permlane32_swap_b32 v{r+1}, v{r+3}")
    e(f"v_add_f32 v{r}, v{r}, v{r+2}")
    e(f"v_add_f32 v{r+1}, v{r+1}, v{r+3}")
    e("s_nop 1")
    e(f"v_permlane16_swap_b32 v{r}, v{r+1}")
    e(f"v_add_f32 v{r}, v{r}, v{r+1}")

hdr = open(f"cdna_kernels/{NAME}.s.ref").read().split("; Override launch geometry")[0]
L.append(hdr.rstrip("\n"))
L.append(f"; @launch grid=(256,1,1) block=({NWAVES*64},1,1) lds={LDS_BYTES}")
L.append('.amdgcn_target "amdgcn-amd-amdhsa--gfx950"')
L.append(".text")
L.append(f".globl {NAME}_kernel")
L.append(".p2align 8")
L.append(f".type {NAME}_kernel,@function")
lab(f"{NAME}_kernel")
if PROFILE: e("s_memrealtime s[48:49]")
e("s_cmp_ge_u32 s2, 256")
e("s_cbranch_scc1 L_end")
e("s_load_dwordx16 s[4:19], s[0:1], 0")
e("s_load_dwordx4 s[20:23], s[0:1], 64")
e("s_load_dwordx2 s[24:25], s[0:1], 80")
e("s_getpc_b64 s[38:39]")
e("v_lshrrev_b32 v1, 6, v0")
e("v_and_b32 v0, 63, v0")
e(f"s_and_b32 {sKVH}, s2, 7")
e(f"v_readfirstlane_b32 {sW}, v1")
e(f"s_lshr_b32 {sR}, s2, 3")
e(f"s_lshr_b32 {sHI}, s2, 5")
e(f"s_and_b32 {sLO}, {sR}, 3")
e(f"s_lshl_b32 {sHG}, {sKVH}, 2")
e(f"s_add_u32 {sHG}, {sHG}, {sLO}")
e(f"s_min_u32 {sRB}, {sHG}, 27")
if PROFILE: e(f"v_mov_b32 v{vTS}, 0")
e(f"v_lshrrev_b32 v{vG}, 4, v0")
e(f"v_mov_b32 v{vFL}, {FL_L}")
e(f"v_mov_b32 v{vONE}, 1")
c("waves: 0 loader, 1 helper, 2..9 compute (renumbered 8, 9, 0..7)")
e(f"s_add_u32 {sW}, {sW}, 8")
e(f"s_cmp_eq_u32 {sW}, 8")
e("s_cbranch_scc1 L_ld")
e(f"s_cmp_eq_u32 {sW}, 9")
e("s_cbranch_scc1 L_hp")
e(f"s_sub_u32 {sW}, {sW}, 10")
e(f"s_lshl_b32 {sT0}, {sW}, 10")
e(f"v_lshl_add_u32 v10, v0, 4, {sT0}")
e("s_waitcnt lgkmcnt(0)")
e(f"global_load_dwordx4 v[16:19], v10, {sX} nt")
e(f"s_load_dword {sEP}, {sWS}, {EP_G}")
e("s_branch L_c")

lab("L_ld")
e("s_setprio 3")
c("weight tiles: row = l>>3, source byte = ((l&7) ^ ((l>>3)&2)) * 16, odd instructions flip byte bit 6")
e("v_lshrrev_b32 v4, 3, v0")
e("v_and_b32 v5, 7, v0")
e("v_and_b32 v1, 2, v4")
e("v_xor_b32 v5, v5, v1")
e("v_lshlrev_b32 v5, 4, v5")
e(f"s_lshl_b32 {sT0}, {sLO}, 20")
e(f"s_lshl_b32 {sT1}, {sKVH}, 10")
e(f"s_add_u32 {sT0}, {sT0}, {sT1}")
e(f"s_lshl_b32 {sT3}, {sHI}, 7")
e(f"s_add_u32 {sT0}, {sT0}, {sT3}")
e("v_lshl_add_u32 v10, v4, 13, v5")
e(f"v_add_u32 v10, {sT0}, v10")
e("v_add_u32 v11, 0x10000, v10")
e("v_xor_b32 v11, 64, v11")
e(f"s_mul_i32 {sT0}, {sHI}, {64*3584}")
e(f"s_lshl_b32 {sT1}, {sRB}, 7")
e(f"s_add_u32 {sT0}, {sT0}, {sT1}")
e("v_mul_u32_u24 v12, 3584, v4")
e(f"v_add3_u32 v12, v12, v5, {sT0}")
e(f"v_add_u32 v13, {8*3584}, v12")
e("v_xor_b32 v13, 64, v13")
e(f"s_mov_b32 m0, {W_L}")
e(f"s_mov_b32 {sT0}, 8")
e("s_waitcnt lgkmcnt(0)")
ts(7)
def wloop(name, base, r, step, n, cnt, thr):
    if cnt is not None: e(f"s_mov_b32 {sT0}, {cnt}")
    lab(name)
    for k in range(2):
        if thr: e(f"s_waitcnt vmcnt({thr-1})")
        e(f"global_load_lds_dwordx4 v{r+k}, {base} nt")
        e("s_add_u32 m0, m0, 1024")
        e(f"v_add_u32 v{r+k}, {step}, v{r+k}")
    e(f"s_sub_u32 {sT0}, {sT0}, 1")
    e(f"s_cmp_lg_u32 {sT0}, 0")
    e(f"s_cbranch_scc1 {name}")
wloop("L_wq", sWQ, 10, "0x20000", 16, None, 0)
wloop("L_w1", sW1, 12, 16*3584, 8, 4, 0)
ts(1)
c("K / V source offsets (swizzled inside each 256-byte row)")
e(f"s_lshl_b32 {sT1}, {sHI}, 3")
e(f"s_add_u32 {sT1}, {sT1}, {sKVH}")
e(f"s_lshl_b32 {sT1}, {sT1}, 20")
e(f"s_lshl_b32 {sT2}, {sLO}, 16")
e(f"s_add_u32 {sT1}, {sT1}, {sT2}")
e(f"s_add_u32 {sT1}, {sT1}, {768*1024}")
e("v_and_b32 v1, 15, v0")
e(f"v_lshl_add_u32 v2, v{vG}, 8, {sT1}")
e(f"v_xor_b32 v10, v1, v{vG}")
e("v_lshl_add_u32 v10, v10, 4, v2")
e("v_xor_b32 v11, 64, v10")
e("v_xor_b32 v12, 128, v10")
e("v_xor_b32 v13, 192, v10")
e(f"v_lshlrev_b32 v14, 1, v{vG}")
e("v_xor_b32 v14, v1, v14")
e("v_lshl_add_u32 v14, v14, 4, v2")
e("v_xor_b32 v15, 128, v14")
e("s_mov_b32 m0, 0")
e("s_barrier")
if PROFILE > 1:
    ts(8)
    for k, n in enumerate((23, 19, 15, 11, 7, 3, 0)):
        e(f"s_waitcnt vmcnt({n})")
        ts(9 + k)
def signal(f):
    if f == F_S0: arrive(F_S0)
    else: e(f"ds_write_b32 v{vFL}, v{vONE} offset:{f}")
def stream_loop(name, base, regs, ngroups, n):
    lo, hi = base[2:-1].split(":")
    if ngroups > 1:
        e(f"s_mov_b32 {sT0}, {ngroups}")
        lab(name)
    for k in range(4):
        e(f"s_waitcnt vmcnt({n-1})")
        e(f"global_load_lds_dwordx4 v{regs[k]}, {base} offset:{k*1024} nt")
    e(f"s_add_u32 s{lo}, s{lo}, 4096")
    e(f"s_addc_u32 s{hi}, s{hi}, 0")
    e("s_add_u32 m0, m0, 4096")
    if ngroups > 1:
        e(f"s_sub_u32 {sT0}, {sT0}, 1")
        e(f"s_cmp_lg_u32 {sT0}, 0")
        e(f"s_cbranch_scc1 {name}")
NG = [NK]*16 + [NV]*(SW-16) + [NL]*(32-SW)
sig = {}
sig.setdefault(GP-1, []).append(F_GO)
pend = [(-1, F_S0), (63, F_KL), (64+47, F_V5), (64+55, F_V6)]
for g in range(32):
    while pend and 4*g + 3 - NG[g] >= pend[0][0]:
        sig.setdefault(g, []).append(pend.pop(0)[1])
g = 0
while g < 32:
    h = g
    while h + 1 < 32 and h not in sig and NG[h+1] == NG[g] and (h+1) != 16: h += 1
    stream_loop(f"L_g{g}", sK if g < 16 else sV, [10,11,12,13] if g < 16 else [14,14,15,15], h - g + 1, NG[g])
    for f in sig.get(h, []):
        signal(f)
        if f == F_S0: ts(6)
    if h == 15: ts(2)
    g = h + 1
ts(3)
c("late weights into the (now free) weight area")
e("v_lshl_add_u32 v1, v4, 10, v5")
e(f"s_lshl_b32 {sT1}, {sHG}, 17")
e(f"s_add_u32 {sT1}, {sT1}, {sT3}")
e(f"v_add_u32 v10, {sT1}, v1")
e("v_add_u32 v11, 0x2000, v10")
e("v_xor_b32 v11, 64, v11")
e(f"s_lshl_b32 {sT1}, {sRB}, 16")
e(f"s_add_u32 {sT1}, {sT1}, {sT3}")
e(f"v_add_u32 v12, {sT1}, v1")
e("v_add_u32 v13, 0x2000, v12")
e("v_xor_b32 v13, 64, v13")
wait_flag("L_wfree", F_WF, 8)
pend.append((127, None))
for i in range(24):
    e(f"s_waitcnt vmcnt({NL-1})")
    bar = False
    while pend and 128 + i - NL >= pend[0][0]:
        f = pend.pop(0)[1]
        if f is None: bar = True
        else: signal(f)
    r = (10 if i < 16 else 12) + (i & 1)
    e(f"global_load_lds_dwordx4 v{r}, {sWO if i < 16 else sW2} nt")
    if bar: e("s_barrier")
    e("s_add_u32 m0, m0, 1024")
    e(f"v_add_u32 v{r}, 0x4000, v{r}")
ts(4)
for (last, f) in pend:
    e(f"s_waitcnt vmcnt({151 - last})")
    if f is None: e("s_barrier")
    else: signal(f)
e("s_waitcnt vmcnt(0)")
ts(5)
dbg_loader()
e("s_barrier")
e("s_branch L_fin")

lab("L_hp")
e(f"v_lshl_add_u32 v1, v0, 2, v{vFL}")
e("v_mov_b32 v2, 0")
e("s_mov_b64 exec, 0xffff")
e("ds_write_b32 v1, v2")
e("s_mov_b64 exec, -1")
c("lines this workgroup will publish into: written whole with zeros first, so that they are resident in L2")
for k in range(4): e(f"v_mov_b32 v{24+k}, 0")
e(f"s_lshl_b32 {sT0}, {sKVH}, 16")
e(f"s_lshl_b32 {sT1}, {sR}, 9")
e(f"s_add_u32 {sT1}, {sT1}, {sT0}")
e(f"s_add_u32 {sT1}, {sT1}, {OG_G}")
e("v_lshrrev_b32 v1, 5, v0")
e("v_and_b32 v2, 31, v0")
e("v_lshlrev_b32 v2, 4, v2")
e("v_lshl_add_u32 v1, v1, 14, v2")
e(f"v_add_u32 v10, {sT1}, v1")
e("v_add_u32 v11, 0x8000, v10")
e(f"s_lshl_b32 {sT1}, {sLO}, 11")
e(f"s_add_u32 {sT0}, {sT0}, {sT1}")
e(f"s_lshl_b32 {sT1}, {sHI}, 8")
e(f"s_add_u32 {sT0}, {sT0}, {sT1}")
e(f"s_add_u32 {sT0}, {sT0}, {QG_G}")
e("v_and_b32 v2, 15, v0")
e("v_lshlrev_b32 v2, 4, v2")
e(f"v_lshl_add_u32 v1, v{vG}, 13, v2")
e(f"v_add_u32 v12, {sT0}, v1")
e("v_add_u32 v13, 0x8000, v12")
e(f"s_lshl_b32 {sT0}, {sRB}, 14")
e(f"s_lshl_b32 {sT1}, {sHI}, 11")
e(f"s_add_u32 {sT0}, {sT0}, {sT1}")
e(f"s_add_u32 {sT0}, {sT0}, {HG_G}")
e(f"v_lshl_add_u32 v14, v0, 4, {sT0}")
e(f"s_lshl_b32 {sT0}, s2, 7")
e(f"s_add_u32 {sT0}, {sT0}, {SG_G}")
e(f"v_lshl_add_u32 v15, v0, 4, {sT0}")
e("s_waitcnt lgkmcnt(0)")
e("s_barrier")
if QPRE:
    e(f"global_store_dwordx4 v12, {vr(24,4)}, {sWS}")
    e(f"global_store_dwordx4 v13, {vr(24,4)}, {sWS}")
    e(f"s_cmp_eq_u32 {sKVH}, 7")
    e("s_cbranch_scc1 L_nohpre")
    e(f"global_store_dwordx4 v14, {vr(24,4)}, {sWS}")
    e(f"global_store_dwordx4 v14, {vr(24,4)}, {sWS} offset:1024")
    lab("L_nohpre")
if OPRE:
    e(f"global_store_dwordx4 v10, {vr(24,4)}, {sWS}")
    e(f"global_store_dwordx4 v11, {vr(24,4)}, {sWS}")
e("s_mov_b64 exec, 0xff")
e(f"global_store_dwordx4 v15, {vr(24,4)}, {sWS}")
e("s_waitcnt vmcnt(0)")
arrive(F_S0)
ts(1)
c("warm L2: two lines of this kernel's code, the output page, the lines the final reduction will poll")
e(f"s_lshl_b32 {sT0}, {sR}, 8")
e(f"s_load_dword s72, s[38:39], {sT0}")
e(f"s_load_dword s73, s[38:39], {sT0} offset:128")
e(f"s_load_dword s74, {sOUT}, 0")
wait_flag("L_hwf", F_GO, 1, sleep=8)
if PRE_F:
    e(f"s_lshl_b32 {sT0}, {sHG}, 14")
    e(f"s_lshl_b32 {sT1}, {sHI}, 11")
    e(f"s_add_u32 {sT0}, {sT0}, {sT1}")
    e(f"s_add_u32 {sT0}, {sT0}, {FG_G}")
    for k in range(16):
        if k == 8: e("s_waitcnt lgkmcnt(0)")
        e(f"s_load_dword s{76+(k&7)}, {sWS}, {sT0} offset:{k*128}")
    e("s_waitcnt lgkmcnt(0)")
    ts(3)
e("s_mov_b64 exec, -1")
e("s_branch L_fin")

lab("L_c")
e(f"s_and_b32 {sCT}, {sW}, 3")
c("reducer output offset: b*512 + hg*16 + (l&3)*4 + (l>>4)")
e("v_and_b32 v1, 3, v0")
e(f"v_lshl_add_u32 v1, v1, 2, v{vG}")
e(f"s_lshl_b32 {sT0}, {sHI}, 9")
e(f"s_lshl_b32 {sT1}, {sHG}, 4")
e(f"s_add_u32 {sT0}, {sT0}, {sT1}")
e(f"v_add_lshl_u32 v{vRO}, v1, {sT0}, 1")
c("weight transpose-read address")
e("v_bfe_u32 v2, v0, 2, 2")
e(f"v_lshl_add_u32 v1, v{vG}, 3, v2")
e("v_bfe_u32 v2, v0, 3, 2")
e(f"v_xor_b32 v2, {sCT}, v2")
e("v_lshlrev_b32 v2, 5, v2")
e("v_lshl_add_u32 v1, v1, 7, v2")
e("v_and_b32 v2, 3, v0")
e("v_lshl_add_u32 v1, v2, 3, v1")
e(f"v_add_u32 v{vWT}, {W_L}, v1")
c("xn write addresses / masks, xn fragment address, publish address")
e(f"s_mul_i32 {sT0}, {sW}, {XN_S}")
e(f"s_add_u32 {sT0}, {sT0}, {XN_L}")
e("v_and_b32 v2, 15, v0")
e(f"v_lshl_add_u32 v10, v2, 4, {sT0}")
e("v_and_b32 v1, 7, v0")
e(f"v_lshl_add_u32 v11, v1, 4, {sT0}")
e(f"s_lshl_b32 {sT0}, {sLO}, 4")
e(f"s_lshl_b64 s[50:51], 0xffff, {sT0}")
e(f"s_lshl_b32 {sT0}, {sHI}, 3")
e(f"s_lshl_b64 s[52:53], 0xff, {sT0}")
e(f"s_lshl_b32 {sT0}, {sHG}, 1")
e(f"s_lshl_b64 s[56:57], 3, {sT0}")
e(f"v_mul_u32_u24 v12, {XN_S}, v1")
e(f"v_lshl_add_u32 v12, v{vG}, 4, v12")
e(f"v_add_u32 v12, {XN_L}, v12")
e("v_and_b32 v14, 1, v0")
e("v_lshlrev_b32 v14, 4, v14")
e(f"v_add_u32 v14, {XR_L}, v14")
e(f"s_lshl_b32 {sT2}, {sCT}, 6")
e(f"v_lshl_add_u32 v1, v{vG}, 4, {sT2}")
e(f"s_lshl_b32 {sT0}, {sKVH}, 16")
e(f"s_lshl_b32 {sT1}, {sLO}, 11")
e(f"s_add_u32 {sT0}, {sT0}, {sT1}")
e(f"s_lshl_b32 {sT1}, {sHI}, 8")
e(f"s_add_u32 {sT0}, {sT0}, {sT1}")
e(f"s_add_u32 {sT0}, {sT0}, {QG_G}")
e(f"s_lshl_b32 {sT2}, {sRB}, 14")
e(f"s_lshl_b32 {sT1}, {sHI}, 11")
e(f"s_add_u32 {sT2}, {sT2}, {sT1}")
e(f"s_add_u32 {sT2}, {sT2}, {HG_G}")
e(f"s_cmp_lt_u32 {sW}, 4")
e(f"s_cselect_b32 {sT0}, {sT0}, {sT2}")
e(f"s_cselect_b32 {sT1}, 13, 8")
e(f"v_lshlrev_b32 v13, {sT1}, v2")
e(f"v_add3_u32 v13, v13, v1, {sT0}")
e("s_barrier")
ts(1)
A, ra = 20, 28
e("s_waitcnt vmcnt(0)")
ts(2)
e(f"s_cmp_lg_u32 {sW}, {sHI}")
e("s_cbranch_scc1 L_noxr")
e("s_mov_b64 exec, s[56:57]")
e("ds_write_b128 v14, v[16:19]")
e("s_mov_b64 exec, -1")
lab("L_noxr")
for k in range(4):
    e(f"v_lshlrev_b32 v{A+2*k}, 16, v{16+k}")
    e(f"v_and_b32 v{A+2*k+1}, 0xffff0000, v{16+k}")
def wave_sum():
    for m in ("quad_perm:[1,0,3,2] row_mask:0xf bank_mask:0xf", "quad_perm:[2,3,0,1] row_mask:0xf bank_mask:0xf",
              "row_half_mirror row_mask:0xf bank_mask:0xf", "row_mirror row_mask:0xf bank_mask:0xf",
              "row_bcast:15 row_mask:0xa bank_mask:0xf", "row_bcast:31 row_mask:0xc bank_mask:0xf"):
        e("s_nop 1")
        e(f"v_add_f32_dpp v{ra}, v{ra}, v{ra} {m}")
    e(f"v_mul_f32 v{ra}, 0x3b000000, v{ra}")
e(f"v_add_f32 v{ra}, v{A}, v{A+1}")
e(f"v_add_f32 v29, v{A+2}, v{A+3}")
e(f"v_add_f32 v30, v{A+4}, v{A+5}")
e(f"v_add_f32 v31, v{A+6}, v{A+7}")
e(f"v_add_f32 v{ra}, v{ra}, v29")
e("v_add_f32 v30, v30, v31")
e(f"v_add_f32 v{ra}, v{ra}, v30")
wave_sum()
e(f"v_cvt_pk_bf16_f32 v29, v{ra}, v{ra}")
e(f"v_readlane_b32 {sT0}, v{ra}, 63")
e(f"v_readlane_b32 {sT2}, v29, 63")
e("s_nop 0")
for k in range(8): e(f"v_subrev_f32 v{32+k}, {sT0}, v{A+k}")
e(f"s_lshl_b32 {sT2}, {sT2}, 16")
e(f"v_mul_f32 v{ra}, v32, v32")
e("v_mul_f32 v29, v33, v33")
for k in range(2, 8, 2):
    e(f"v_fmac_f32 v{ra}, v{32+k}, v{32+k}")
    e(f"v_fmac_f32 v29, v{33+k}, v{33+k}")
e(f"v_add_f32 v{ra}, v{ra}, v29")
wave_sum()
round1(ra)
e(f"v_add_f32 v{ra}, 0x3727c5ac, v{ra}")
round1(ra)
e(f"v_sqrt_f32 v{ra}, v{ra}")
for k in range(8): e(f"v_subrev_f32 v{A+k}, {sT2}, v{A+k}")
round1(ra)
e(f"v_rcp_f32 v29, v{ra}")
for k in range(4): round2(A+2*k, A+2*k+1, 30 + (k & 1))
e(f"v_readlane_b32 {sT0}, v{ra}, 63")
e(f"v_readlane_b32 {sT4}, v29, 63")
e("s_nop 1")
for k in range(8): e(f"v_mul_f32 v{32+k}, {sT4}, v{A+k}")
for k in range(8): e(f"v_fma_f32 v{A+k}, -v{32+k}, {sT0}, v{A+k}")
for k in range(8): e(f"v_fma_f32 v{32+k}, v{A+k}, {sT4}, v{32+k}")
for k in range(4): e(f"v_cvt_pk_bf16_f32 v{16+k}, v{32+2*k}, v{33+2*k}")
e("s_mov_b64 exec, s[50:51]")
e("ds_write_b128 v10, v[16:19]")
e("s_mov_b64 exec, s[52:53]")
e("ds_write_b128 v11, v[16:19] offset:256")
arrive(F_S0)
e("s_waitcnt lgkmcnt(0)")
ts(3)
e(f"s_add_u32 {sEP}, {sEP}, 1")
e(f"s_and_b32 {sTAG}, {sEP}, 0xff")
e(f"s_cselect_b32 {sT0}, 0, 1")
e(f"s_add_u32 {sEP}, {sEP}, {sT0}")
e(f"s_add_u32 {sTAG}, {sTAG}, {sT0}")
e(f"s_mov_b32 {sMSK}, 0xffffff00")
e(f"v_mov_b32 v{vTAG}, {sTAG}")
c("q partials also carry the producer's XCC id, one bit per dword (bit 8)")
e(f"s_getreg_b32 {sT1}, hwreg(HW_REG_XCC_ID, 0, 4)")
for k, sx in enumerate(sXT):
    e(f"s_lshl_b32 {sx}, {sT1}, {8-k}")
    e(f"s_and_b32 {sx}, {sx}, 0x100")
    e(f"s_or_b32 {sx}, {sx}, {sTAG}")
e("v_mov_b32 v60, 0xfffffe00")
wait_flag("L_s0", F_S0, 10, sleep=1)
ts(5)
e(f"s_cmp_ge_u32 {sW}, 4")
e("s_cbranch_scc1 L_hproj")
for s in range(4):
    e(f"ds_read_b64_tr_b16 {vr(24+4*s,2)}, v{vWT} offset:{WA_O + s*4096}")
    e(f"ds_read_b64_tr_b16 {vr(26+4*s,2)}, v{vWT} offset:{WA_O + s*4096 + 512}")
    e(f"ds_read_b128 {vr(40+4*s,4)}, v12 offset:{s*64}")
for s in range(4):
    e(f"s_waitcnt lgkmcnt({9-3*s})")
    e(f"v_mfma_f32_16x16x32_bf16 {vr(20,4)}, {vr(24+4*s,4)}, {vr(40+4*s,4)}, " + ("0" if s == 0 else vr(20,4)))
e("s_mov_b32 exec_lo, 0x00ff00ff")
e("s_mov_b32 exec_hi, 0x00ff00ff")
e("s_nop 5")
for k, sx in enumerate(sXT):
    e(f"v_and_or_b32 v{20+k}, v{20+k}, v60, {sx}")
e("s_branch L_pub")
lab("L_hproj")
for s in range(2):
    e(f"ds_read_b64_tr_b16 {vr(24+4*s,2)}, v{vWT} offset:{WB_O + s*4096}")
    e(f"ds_read_b64_tr_b16 {vr(26+4*s,2)}, v{vWT} offset:{WB_O + s*4096 + 512}")
    e(f"ds_read_b128 {vr(40+4*s,4)}, v12 offset:{256 + s*64}")
for s in range(2):
    e(f"s_waitcnt lgkmcnt({3-3*s})")
    e(f"v_mfma_f32_16x16x32_bf16 {vr(20,4)}, {vr(24+4*s,4)}, {vr(40+4*s,4)}, " + ("0" if s == 0 else vr(20,4)))
e(f"s_cmp_eq_u32 {sKVH}, 7")
e("s_cbranch_scc1 L_pq_ok")
e("s_mov_b32 exec_lo, 0x00ff00ff")
e("s_mov_b32 exec_hi, 0x00ff00ff")
e("s_nop 5")
tag4(20)
lab("L_pub")
if not NOPUB: e(f"global_store_dwordx4 v13, {vr(20,4)}, {sWS}" + {0: " sc1", 1: "", 2: " sc1 nt", 3: " nt"}[QPLAIN])
lab("L_pq_ok")
arrive(F_WF)
ts(6)
e("v_and_b32 v2, 15, v0")
e(f"v_lshlrev_b32 v1, 11, v{vG}")
e("v_lshl_add_u32 v1, v2, 4, v1")
e(f"s_lshl_b32 {sT0}, {sKVH}, 16")
e(f"s_lshl_b32 {sT1}, {sHI}, 13")
e(f"s_add_u32 {sT0}, {sT0}, {sT1}")
e(f"s_lshl_b32 {sT1}, {sW}, 8")
e(f"s_add_u32 {sT0}, {sT0}, {sT1}")
e(f"s_add_u32 {sT0}, {sT0}, {QG_G}")
e(f"v_add_u32 v10, {sT0}, v1")
e(f"s_lshl_b32 {sT0}, {sRB}, 14")
e(f"s_add_u32 {sT0}, {sT0}, {sT1}")
e(f"s_add_u32 {sT0}, {sT0}, {HG_G}")
e(f"v_add_u32 v11, {sT0}, v1")
e("v_add_u32 v12, 0x2000, v11")
e(f"v_lshlrev_b32 v1, 1, v{vG}")
e("v_lshl_add_u32 v1, v2, 3, v1")
e(f"s_lshr_b32 {sT0}, {sW}, 1")
e(f"s_mul_i32 {sT0}, {sT0}, {QL_S}")
e(f"s_and_b32 {sT1}, {sW}, 1")
e(f"s_lshl_b32 {sT1}, {sT1}, 7")
e(f"s_add_u32 {sT0}, {sT0}, {sT1}")
e(f"s_add_u32 {sT0}, {sT0}, {QL_L}")
e(f"v_add_u32 v13, {sT0}, v1")
e(f"s_mul_i32 {sT0}, {sW}, {HL_S}")
e(f"s_add_u32 {sT0}, {sT0}, {HL_L}")
e(f"v_add_u32 v16, {sT0}, v1")
e(f"v_xor_b32 v1, v{vG}, v2")
e("v_lshlrev_b32 v1, 4, v1")
e("v_lshl_add_u32 v1, v2, 8, v1")
e(f"s_lshl_b32 {sT0}, {sW}, 13")
e(f"v_add_u32 v20, {sT0}, v1")
e("v_xor_b32 v21, 64, v20")
e("v_xor_b32 v22, 128, v20")
e("v_xor_b32 v23, 192, v20")
e("v_and_b32 v1, 3, v0")
e(f"v_mul_u32_u24 v17, {QL_S}, v1")
e(f"v_lshl_add_u32 v17, v{vG}, 4, v17")
e(f"v_add_u32 v17, {QL_L}, v17")
e("v_lshlrev_b32 v18, 5, v1")
e(f"v_add_u32 v18, {MX_L}, v18")
e(f"s_lshl_b32 {sT0}, {sW}, 2")
e(f"v_add_u32 v19, {sT0}, v18")
e(f"v_mul_u32_u24 v2, {PL_S}, v1")
e(f"v_lshl_add_u32 v{vFP}, v{vG}, 4, v2")
e(f"v_add_u32 v{vFP}, {PL_L}, v{vFP}")
e("v_lshrrev_b32 v1, 2, v0")
e("v_lshl_add_u32 v2, v1, 1, v2")
e(f"s_lshl_b32 {sT0}, {sW}, 6")
e(f"s_add_u32 {sT0}, {sT0}, {PL_L}")
e(f"v_add_u32 v119, {sT0}, v2")
e(f"s_mov_b32 {sSPIN}, 0")
wait_flag("L_gp", F_GO, 1, sleep=2)
ts(7)
GFL = {0: " sc1", 1: " nt", 2: "", 3: " sc0 sc1", 4: " sc1 nt"}[opt("gfl", 0)]
def q_loads(): e(f"global_load_dwordx4 {vr(24,4)}, v10, {sWS}" + GFL)
def h_loads():
    e(f"global_load_dwordx4 {vr(28,4)}, v11, {sWS}" + GFL)
    e(f"global_load_dwordx4 {vr(32,4)}, v12, {sWS}" + GFL)
if not NOGQ: poll("L_q", q_loads, [24,25,26,27], 36, SLP_Q, issued=False, tags=sXT)
else:
    if NOGQ == 2:
        e("v_and_b32 v10, 0x1ff0, v10")
        e(f"global_load_dwordx4 {vr(24,4)}, v10, {sX} sc1")
        e("s_waitcnt vmcnt(0)")
    if NOGQ == 3:
        e("s_sleep 40")
    for k in range(4): e(f"v_mov_b32 v{24+k}, 0")
if PROFILE: e(f"v_writelane_b32 v{vTS}, {sSPIN}, 23")
e(f"s_cmp_eq_u32 {sKVH}, 7")
e("s_cbranch_scc1 L_nohl")
if not NOGH: h_loads()
lab("L_nohl")
e("v_or3_b32 v36, v24, v25, v26")
e("v_or_b32 v36, v36, v27")
e("v_and_b32 v36, 0x100, v36")
e("v_cmp_ne_u32 vcc, 0, v36")
for k in range(4): e(f"v_and_b32 v{24+k}, v60, v{24+k}")
e("s_cmp_lg_u64 vcc, 0")
e(f"s_cselect_b32 {sT1}, 0x10001, 1")
e(f"v_mov_b32 v36, {sT1}")
fold4(24)
e("v_cvt_pk_bf16_f32 v24, v24, v24")
e("ds_write_b16 v13, v24")
e("s_mov_b64 exec, 1")
e(f"ds_add_u32 v{vFL}, v36 offset:{F_S1}")
e("s_mov_b64 exec, -1")
ts(8)
KF, QF = 40, 72
wait_flag("L_kl", F_KL, 1, sleep=2)
for t in range(2):
    for s in range(4):
        e(f"ds_read_b128 {vr(KF+16*t+4*s,4)}, v{20+s} offset:{t*4096}")
lab("L_s1")
e(f"ds_read_b32 v1, v{vFL} offset:{F_S1}")
e("s_waitcnt lgkmcnt(0)")
e(f"v_readfirstlane_b32 {sFAST}, v1")
e(f"s_and_b32 {sT0}, {sFAST}, 0xffff")
e(f"s_cmp_lt_u32 {sT0}, 8")
e("s_cbranch_scc1 L_s1")
e(f"s_lshr_b32 {sFAST}, {sFAST}, 16")
ts(9)
for s in range(4): e(f"ds_read_b128 {vr(QF+4*s,4)}, v17 offset:{s*64}")
for s in range(4):
    e(f"s_waitcnt lgkmcnt({3-s})")
    for t in range(2):
        e(f"v_mfma_f32_16x16x32_bf16 {vr(88+4*t,4)}, {vr(KF+16*t+4*s,4)}, {vr(QF+4*s,4)}, " + ("0" if s == 0 else vr(88+4*t,4)))
e("s_nop 7")
for k in range(1, 4):
    e(f"v_mov_b32_dpp v88, v{88+k} quad_perm:[0,1,2,3] row_mask:0xf bank_mask:{1<<k:#x}")
    e(f"v_mov_b32_dpp v92, v{92+k} quad_perm:[0,1,2,3] row_mask:0xf bank_mask:{1<<k:#x}")
    if k < 3: e("s_nop 0")
c("scores: bf16(bf16(qk) * scale)")
round2(88, 92, 89)
e("v_mul_f32 v88, 0x3db504f3, v88")
e("v_mul_f32 v92, 0x3db504f3, v92")
round2(88, 92, 89)
e("v_max_f32 v90, v88, v92")
e("s_nop 1")
e("v_max_f32_dpp v90, v90, v90 row_ror:4 row_mask:0xf bank_mask:0xf")
e("s_nop 1")
e("v_max_f32_dpp v90, v90, v90 row_ror:8 row_mask:0xf bank_mask:0xf")
e("v_mov_b32 v91, v90")
e("s_nop 1")
e("v_permlane16_swap_b32 v90, v91")
e("v_max_f32 v90, v90, v91")
e("v_mov_b32 v91, v90")
e("s_nop 1")
e("v_permlane32_swap_b32 v90, v91")
e("v_max_f32 v90, v90, v91")
e("s_mov_b64 exec, 15")
e("ds_write_b32 v19, v90")
arrive(F_S2)
ts(10)
wait_flag("L_s2", F_S2, 8)
e(f"ds_read_b128 {vr(96,4)}, v18")
e(f"ds_read_b128 {vr(100,4)}, v18 offset:16")
e("s_waitcnt lgkmcnt(0)")
e("v_max3_f32 v96, v96, v97, v98")
e("v_max3_f32 v100, v100, v101, v102")
e("v_max3_f32 v96, v96, v99, v103")
e("v_max_f32 v96, v96, v100")
e("v_sub_f32 v88, v88, v96")
e("v_sub_f32 v92, v92, v96")
e(f"v_mul_f32 v88, {LOG2E}, v88")
e(f"v_mul_f32 v92, {LOG2E}, v92")
e("v_exp_f32 v88, v88")
e("v_exp_f32 v92, v92")
e("s_nop 0")
e("v_cvt_pk_bf16_f32 v88, v88, v92")
e("ds_write_b16 v119, v88")
e("ds_write_b16_d16_hi v119, v88 offset:32")
arrive(F_S3)
ts(11)
PF, VF, OD = 40, 72, 104
c("addresses: V transpose read, o publish, o gather, stats, o LDS write, fragments, final publish / gather")
e("v_and_b32 v1, 3, v0")
e("v_bfe_u32 v2, v0, 2, 2")
e(f"v_lshl_add_u32 v2, v{vG}, 3, v2")
e("v_bfe_u32 v10, v0, 2, 3")
e(f"v_xor_b32 v10, {sW}, v10")
e("v_lshlrev_b32 v10, 5, v10")
e("v_lshl_add_u32 v10, v2, 8, v10")
e("v_lshl_add_u32 v10, v1, 3, v10")
e(f"v_add_u32 v10, {V_L}, v10")
e(f"s_lshl_b32 {sT0}, s2, 7")
e(f"s_add_u32 {sT0}, {sT0}, {SG_G}")
e(f"v_lshl_add_u32 v14, v1, 4, {sT0}")
wait_flag("L_s3", F_S3, 8)
ts(12)
for t in range(8):
    e(f"ds_read_b128 {vr(PF+4*t,4)}, v{vFP} offset:{t*64}")
e(f"s_cmp_lg_u32 {sW}, 7")
e("s_cbranch_scc1 L_nostats")
c("wave 7: row sums of P by MFMA with ones, publish (m, l)")
for k in range(4): e(f"v_mov_b32 v{20+k}, 0x3f803f80")
e("s_waitcnt lgkmcnt(0)")
for t in range(8):
    e(f"v_mfma_f32_16x16x32_bf16 {vr(108,4)}, {vr(20,4)}, {vr(PF+4*t,4)}, " + ("0" if t == 0 else vr(108,4)))
e("v_mov_b32 v24, v96")
e("v_mov_b32 v26, v96")
e("s_mov_b64 exec, 15")
e("s_nop 4")
e("v_mov_b32 v25, v108")
e("v_mov_b32 v27, v108")
tag4(24)
pub("L_ps", 14, 24, OPLAIN)
e("s_mov_b64 exec, -1")
lab("L_nostats")
c("h: finish the gather, silu")
e(f"s_cmp_eq_u32 {sKVH}, 7")
e("s_cbranch_scc1 L_hdone")
if not NOGH: poll("L_h", h_loads, list(range(28, 36)), 36, SLP_Q)
for k in range(4): e(f"v_add_f32 v{28+k}, v{28+k}, v{32+k}")
fold4(28)
round1(28)
e("v_mul_f32 v29, 0xbfb8aa3b, v28")
e("v_exp_f32 v29, v29")
e("s_nop 0")
e("v_add_f32 v29, 1.0, v29")
e("v_rcp_f32 v29, v29")
e("s_nop 0")
e("v_mul_f32 v28, v28, v29")
e("v_cvt_pk_bf16_f32 v28, v28, v28")
e("ds_write_b16 v16, v28")
lab("L_hdone")
e("v_and_b32 v1, 3, v0")
e(f"s_lshl_b32 {sT0}, {sKVH}, 16")
e(f"s_lshl_b32 {sT1}, {sR}, 9")
e(f"s_add_u32 {sT0}, {sT0}, {sT1}")
e(f"s_lshl_b32 {sT1}, {sW}, 6")
e(f"s_add_u32 {sT0}, {sT0}, {sT1}")
e(f"s_add_u32 {sT0}, {sT0}, {OG_G}")
e("v_lshlrev_b32 v2, 14, v1")
e(f"v_lshl_add_u32 v2, v{vG}, 4, v2")
e(f"v_add_u32 v11, {sT0}, v2")
e(f"s_lshl_b32 {sT0}, {sHG}, 14")
e(f"s_lshl_b32 {sT2}, {sW}, 11")
e(f"s_add_u32 {sT0}, {sT0}, {sT2}")
e(f"s_add_u32 {sT0}, {sT0}, {OG_G}")
e(f"v_lshl_add_u32 v12, v0, 4, {sT0}")
e("v_and_b32 v2, 31, v0")
e("v_lshrrev_b32 v15, 5, v0")
e("v_lshlrev_b32 v15, 2, v15")
e("v_lshl_add_u32 v15, v2, 3, v15")
e(f"s_mul_i32 {sT0}, {sW}, {OL_S}")
e(f"v_add_u32 v15, {sT0}, v15")
e("v_and_b32 v1, 7, v0")
e(f"v_mul_u32_u24 v16, {HL_S}, v1")
e(f"v_lshl_add_u32 v16, v{vG}, 4, v16")
e(f"v_add_u32 v16, {HL_L}, v16")
e(f"v_mul_u32_u24 v17, {OL_S}, v1")
e(f"v_lshl_add_u32 v17, v{vG}, 4, v17")
e(f"s_lshl_b32 {sT0}, {sHI}, 2")
e(f"s_add_u32 {sT0}, {sT0}, {sCT}")
e(f"s_lshl_b32 {sT0}, {sT0}, 14")
e(f"s_lshl_b32 {sT1}, {sHG}, 6")
e(f"s_add_u32 {sT0}, {sT0}, {sT1}")
e(f"s_add_u32 {sT0}, {sT0}, {FG_G}")
e("v_lshlrev_b32 v18, 11, v1")
e(f"v_lshl_add_u32 v18, v{vG}, 4, v18")
e(f"v_add_u32 v18, {sT0}, v18")
e(f"s_lshl_b32 {sT0}, {sHG}, 14")
e(f"s_lshl_b32 {sT1}, {sHI}, 11")
e(f"s_add_u32 {sT0}, {sT0}, {sT1}")
e(f"s_add_u32 {sT0}, {sT0}, {FG_G}")
e(f"v_lshl_add_u32 v19, v0, 4, {sT0}")
e(f"s_lshl_b32 {sT5}, {sW}, 12")
e(f"s_lshl_b32 {sT1}, {sKVH}, 7")
e(f"s_add_u32 {sT5}, {sT5}, {sT1}")
e(f"s_lshl_b32 {sT1}, {sLO}, 4")
e(f"s_add_u32 {sT5}, {sT5}, {sT1}")
def pv(tiles, first):
    for n, t in enumerate(tiles):
        e(f"ds_read_b64_tr_b16 {vr(VF+4*n,2)}, v10 offset:{t*8192}")
        e(f"ds_read_b64_tr_b16 {vr(VF+4*n+2,2)}, v10 offset:{t*8192+1024}")
    for n, t in enumerate(tiles):
        e(f"s_waitcnt lgkmcnt({2*(len(tiles)-1-n)})")
        e(f"v_mfma_f32_16x16x32_bf16 {vr(OD,4)}, {vr(VF+4*n,4)}, {vr(PF+4*t,4)}, " + ("0" if first and n == 0 else vr(OD,4)))
wait_flag("L_v5", F_V5, 1, sleep=2)
ts(13)
pv([0,1,2,3,4,5], True)
wait_flag("L_v6", F_V6, 1, sleep=1)
pv([6], False)
ST = 72
def st_loads():
    for k in range(4): e(f"s_load_dwordx4 s[{ST+4*k}:{ST+4*k+3}], {sWS}, {sT5} offset:{SG_G + k*1024} glc")
e("s_barrier")
ts(14)
pv([7], False)
st_loads()
e("s_mov_b32 exec_lo, 0x000f000f")
e("s_mov_b32 exec_hi, 0x000f000f")
e("s_nop 1")
tag4(OD)
pub("L_po", 11, OD, OPLAIN)
e("s_mov_b64 exec, -1")
if PROFILE: ts(15)
c("stats of the four chunks of batch w: {m, l, m, l} + tags, read through the scalar path")
e("s_branch L_st_chk")
lab("L_st_poll")
e(f"s_sleep {SLP_O}")
st_loads()
lab("L_st_chk")
e("s_waitcnt lgkmcnt(0)")
for k in range(4):
    e(f"s_xor_b64 s[{ST+4*k+2}:{ST+4*k+3}], s[{ST+4*k+2}:{ST+4*k+3}], s[{ST+4*k}:{ST+4*k+1}]")
    e(f"s_xor_b32 s{ST+4*k}, s{ST+4*k}, {sTAG}")
    e(f"s_xor_b32 s{ST+4*k+1}, s{ST+4*k+1}, {sTAG}")
e(f"s_or_b64 s[{AN}:{AN+1}], s[{ST}:{ST+1}], s[{ST+4}:{ST+5}]")
e(f"s_or_b64 s[{AN+2}:{AN+3}], s[{ST+8}:{ST+9}], s[{ST+12}:{ST+13}]")
e(f"s_or_b64 s[{AN}:{AN+1}], s[{AN}:{AN+1}], s[{AN+2}:{AN+3}]")
e(f"s_or_b32 s{AN}, s{AN}, s{AN+1}")
e(f"s_and_b32 s{AN}, s{AN}, 0xff")
e(f"s_or_b64 s[{AN+2}:{AN+3}], s[{ST+2}:{ST+3}], s[{ST+6}:{ST+7}]")
e(f"s_or_b64 s[{AN+4}:{AN+5}], s[{ST+10}:{ST+11}], s[{ST+14}:{ST+15}]")
e(f"s_or_b64 s[{AN+2}:{AN+3}], s[{AN+2}:{AN+3}], s[{AN+4}:{AN+5}]")
e(f"s_or_b32 s{AN}, s{AN}, s{AN+2}")
e(f"s_or_b32 s{AN}, s{AN}, s{AN+3}")
e("s_cbranch_scc0 L_st_done")
e(f"s_add_u32 {sSPIN}, {sSPIN}, 1")
e(f"s_cmp_le_u32 {sSPIN}, {SPIN_MAX}")
e("s_cbranch_scc1 L_st_poll")
lab("L_st_done")
def o_loads():
    e(f"global_load_dwordx4 {vr(24,4)}, v12, {sWS} sc1" + ONT)
    e(f"global_load_dwordx4 {vr(28,4)}, v12, {sWS} offset:1024 sc1" + ONT)
o_loads()
c("alpha[c] = exp(m_c - m) / sum_c(l_c exp(m_c - m))")
for k in range(4): e(f"v_mov_b32 v{32+k}, s{ST+4*k}")
e("v_max3_f32 v20, v32, v33, v34")
e("v_max_f32 v20, v20, v35")
for k in range(4): e(f"v_sub_f32 v{32+k}, v{32+k}, v20")
for k in range(4): e(f"v_mul_f32 v{32+k}, {LOG2E}, v{32+k}")
for k in range(4): e(f"v_exp_f32 v{32+k}, v{32+k}")
e(f"v_mul_f32 v20, s{ST+1}, v32")
e(f"v_mul_f32 v21, s{ST+5}, v33")
e(f"v_fmac_f32 v20, s{ST+9}, v34")
e(f"v_fmac_f32 v21, s{ST+13}, v35")
e("v_add_f32 v20, v20, v21")
e("v_rcp_f32 v20, v20")
e("s_mov_b32 exec_lo, 0")
e("v_mov_b32 v32, v33")
e("v_mov_b32 v34, v35")
e("s_mov_b32 exec_lo, -1")
e("v_mul_f32 v22, v32, v20")
e("v_mul_f32 v23, v34, v20")
ts(16)
e("s_barrier")
ts(17)
WF, W2F, HF, FD = 40, 56, 64, 108
e(f"s_cmp_ge_u32 {sW}, 4")
e("s_cbranch_scc1 L_nowf")
for s in range(2):
    e(f"ds_read_b64_tr_b16 {vr(W2F+4*s,2)}, v{vWT} offset:{WB_O + s*4096}")
    e(f"ds_read_b64_tr_b16 {vr(W2F+4*s+2,2)}, v{vWT} offset:{WB_O + s*4096 + 512}")
e(f"ds_read_b128 {vr(HF,4)}, v16")
e(f"ds_read_b128 {vr(HF+4,4)}, v16 offset:64")
for s in range(4):
    e(f"ds_read_b64_tr_b16 {vr(WF+4*s,2)}, v{vWT} offset:{WA_O + s*4096}")
    e(f"ds_read_b64_tr_b16 {vr(WF+4*s+2,2)}, v{vWT} offset:{WA_O + s*4096 + 512}")
for k in range(4): e(f"v_mov_b32 v{FD+k}, 0")
lab("L_nowf")
poll("L_o", o_loads, list(range(24, 32)), 36, SLP_O)
ts(18)
for k in range(4): e(f"v_mul_f32 v{24+k}, v22, v{24+k}")
for k in range(4): e(f"v_fmac_f32 v{24+k}, v23, v{28+k}")
e("s_nop 1")
e("v_permlane32_swap_b32 v24, v26")
e("v_permlane32_swap_b32 v25, v27")
e("v_add_f32 v24, v24, v26")
e("v_add_f32 v25, v25, v27")
e("v_cvt_pk_bf16_f32 v24, v24, v25")
e("ds_write_b32 v15, v24")
e("s_waitcnt lgkmcnt(0)")
e("s_barrier")
ts(19)
e(f"s_cmp_ge_u32 {sW}, 4")
e("s_cbranch_scc1 L_red")
OF = 72
for s in range(4): e(f"ds_read_b128 {vr(OF+4*s,4)}, v17 offset:{s*64}")
e(f"s_cmp_eq_u32 {sKVH}, 7")
e("s_cbranch_scc1 L_noffn")
e(f"v_mfma_f32_16x16x32_bf16 {vr(FD,4)}, {vr(W2F,4)}, {vr(HF,4)}, 0")
e(f"v_mfma_f32_16x16x32_bf16 {vr(FD,4)}, {vr(W2F+4,4)}, {vr(HF+4,4)}, {vr(FD,4)}")
lab("L_noffn")
for s in range(4):
    e(f"s_waitcnt lgkmcnt({3-s})")
    e(f"v_mfma_f32_16x16x32_bf16 {vr(FD,4)}, {vr(WF+4*s,4)}, {vr(OF+4*s,4)}, {vr(FD,4)}")
e("s_mov_b32 exec_lo, 0x00ff00ff")
e("s_mov_b32 exec_hi, 0x00ff00ff")
e("s_nop 5")
tag4(FD)
e(f"global_store_dwordx4 v18, {vr(FD,4)}, {sWS} sc1")
e("s_mov_b64 exec, -1")
ts(20)
e("s_branch L_fin")
lab("L_red")
e(f"s_cmp_lg_u32 {sW}, 4")
e("s_cbranch_scc1 L_fin")
c("reducer (b = hi, column tile = hg)")
e(f"v_and_b32 v1, 31, v{vRO}")
e(f"v_add_u32 v1, {XR_L}, v1")
e("ds_read_u16 v2, v1")
def f_loads():
    e(f"global_load_dwordx4 {vr(24,4)}, v19, {sWS} sc1" + FNT)
    e(f"global_load_dwordx4 {vr(28,4)}, v19, {sWS} offset:1024 sc1" + FNT)
e("s_waitcnt lgkmcnt(0)")
e("v_lshlrev_b32 v2, 16, v2")
poll("L_f", f_loads, list(range(24, 32)), 36, SLP_F, issued=False)
ts(21)
for k in range(4): e(f"v_add_f32 v{24+k}, v{24+k}, v{28+k}")
fold4(24)
e("s_nop 1")
e("v_add_f32_dpp v24, v24, v24 row_ror:4 row_mask:0xf bank_mask:0xf")
e("s_nop 1")
e("v_add_f32_dpp v24, v24, v24 row_ror:8 row_mask:0xf bank_mask:0xf")
e("v_add_f32 v24, v24, v2")
e("v_cvt_pk_bf16_f32 v24, v24, v24")
e("s_mov_b32 exec_lo, 0x000f000f")
e("s_mov_b32 exec_hi, 0x000f000f")
e(f"global_store_short v{vRO}, v24, {sOUT}")
e("s_cmp_lg_u32 s2, 0")
e("s_cbranch_scc1 L_fin0")
c("workgroup 0 has (transitively) heard from every workgroup: advance the epoch")
e("s_mov_b64 exec, 1")
e(f"v_mov_b32 v1, {EP_G}")
e(f"v_mov_b32 v2, {sEP}")
e(f"global_store_dword v1, v2, {sWS}")
lab("L_fin0")
e("s_mov_b64 exec, -1")
ts(22)
dbg_out()
lab("L_fin")
ts_flush()
lab("L_end")
e("s_endpgm")
L.append(f""".section .rodata,"a"
.p2align 6
.amdhsa_kernel {NAME}_kernel
  .amdhsa_next_free_vgpr 128
  .amdhsa_next_free_sgpr 96
  .amdhsa_accum_offset 128
  .amdhsa_group_segment_fixed_size 0
  .amdhsa_kernarg_size 88
  .amdhsa_user_sgpr_count 2
  .amdhsa_user_sgpr_kernarg_segment_ptr 1
  .amdhsa_system_sgpr_workgroup_id_x 1
  .amdhsa_float_denorm_mode_32 3
.end_amdhsa_kernel""")
open(OUT, "w").write("\n".join(L) + "\n")
```

```python
import sys
NAME = "parallel_sum__sliding_block_cached__dense_activation_silu__decode"
opts = dict(a.split("=") for a in sys.argv[2:])
OUT = sys.argv[1] if len(sys.argv) > 1 else f"cdna_kernels/{NAME}.s"
def opt(k, d): return int(opts.get(k, d))
PROFILE = opt("prof", 0)
NLD = opt("nld", 1)
NS = [int(x) for x in opts.get("ns", "24,24,24,24,24").split(",")]
NS2 = [int(x) for x in opts["ns2"].split(",")] if "ns2" in opts else None
ASYM = int(opts.get("asym", "0xf0"), 0)
QTRY, QGAP = opt("qtry", 3), opt("qgap", 12)
ROT, WROT = opt("rot", 1), opt("wrot", 1)
ABL = opt("abl", 0)
NODUP = opt("nodup", 0)
EK = opt("ek", 0)
GP = opt("gp", 12)
SLP_Q, SLP_O, SLP_F = opt("slq", 4), opt("slo", 1), opt("slf", 4)
PRE_O, PRE_F, PRE_AT = opt("preo", 0), opt("pref", 0), opt("preat", 0)
FPIPE = opt("fpipe", 1)
RQ = opt("rq", 3)
TLBW = opt("tlbw", 0)
FDLY = opt("fdly", 0)
assert NLD == 1
NWAVES = 9 + NLD

L = []
def e(s): L.append("    " + s)
def lab(s): L.append(s + ":")
def c(s): L.append("    ; " + s)
def vr(a, n): return f"v[{a}:{a+n-1}]"

K_L, V_L, W_L = 0, 65536, 131072
WA_O, WB_O = 0, 16384
M_L = 155648
QL_L, QL_S = M_L, 288
PL_L, PL_S = QL_L + 4*288, 544
HL_L, HL_S = PL_L + 4*544, 160
MX_L = HL_L + 8*160
FL_L = MX_L + 128
XN_L, XN_S = FL_L + 64, 416
XR_L = XN_L + 8*XN_S
OL_L, OL_S = K_L, 288
LDS_BYTES = 163840
assert XR_L + 32 <= LDS_BYTES
F_GO, F_S0, F_WF, F_S1, F_S2, F_S3, F_KL, F_V5, F_V6 = 0, 4, 8, 12, 16, 20, 24, 28, 32
EP_G = 0
SG_G = 0x8000
QG_G = 0x10000
HG_G = QG_G + 0x80000
OG_G = HG_G + 0x70000
FG_G = OG_G + 0x80000
TS_G = 0x400000
assert FG_G + 0x80000 <= 0x200000
sX, sK, sV, sWQ, sWO, sW1, sW2, sOUT, sDBG, sWS = "s[4:5]", "s[6:7]", "s[8:9]", "s[10:11]", "s[12:13]", "s[16:17]", "s[18:19]", "s[20:21]", "s[22:23]", "s[24:25]"
sKVH, sR, sHI, sLO, sW, sEP, sTAG, sHG, sRB, sT0, sMSK, sSPIN = "s26", "s27", "s28", "s29", "s30", "s31", "s32", "s33", "s34", "s35", "s36", "s37"
sT1, sT2, sT3, sT4, sT5, sCT = "s42", "s43", "s44", "s45", "s46", "s47"
sFAST, sXC, sDO = "s54", "s55", "s3"
sDONE = "s55"
sXT = ["s60", "s61", "s62", "s63"]
AN = 64
SPIN_MAX = 1 << 18
LOG2E = "0x3fb8aa3b"
vTS = 120
def ts(k):
    if PROFILE:
        e("s_memrealtime s[40:41]")
        e("s_waitcnt lgkmcnt(0)")
        e(f"v_writelane_b32 v{vTS}, s40, {k}")
DBG = opt("dbg", 0)
def dbg_loader():
    if DBG:
        e(f"v_lshl_add_u32 v1, v0, 2, v{vFL}")
        e(f"ds_write_b32 v1, v{vTS} offset:64")
        e("s_waitcnt lgkmcnt(0)")
def dbg_out():
    if DBG:
        e(f"v_lshl_add_u32 v1, v0, 2, v{vFL}")
        e("ds_read_b32 v2, v1 offset:64")
        e("s_waitcnt lgkmcnt(0)")
        e("v_mov_b32 v3, 0")
        e("s_not_b32 s49, s48")
        e("v_writelane_b32 v3, s49, 0")
        e("v_writelane_b32 v3, s48, 1")
        for slot, k in enumerate((2, 5, 6, 8, 12, 14, 17, 19, 22)):
            e(f"v_readlane_b32 s49, v{vTS}, {k}")
            e("s_nop 3")
            e(f"v_writelane_b32 v3, s49, {2+slot}")
        for slot, k in enumerate((7, 1, 2, 3, 5)):
            e(f"v_readlane_b32 s49, v2, {k}")
            e("s_nop 3")
            e(f"v_writelane_b32 v3, s49, {11+slot}")
        e("v_lshlrev_b32 v1, 2, v0")
        e("s_mov_b64 exec, 0xffff")
        e(f"global_atomic_umax v1, v3, {sDBG}")
def ts_flush():
    if PROFILE and not DBG:
        e(f"v_writelane_b32 v{vTS}, s48, 0")
        e("s_mov_b64 exec, 0xffffff")
        e(f"s_mul_i32 {sT0}, s2, {NWAVES}")
        e(f"s_add_u32 {sT0}, {sT0}, {sW}")
        e(f"s_lshl_b32 {sT0}, {sT0}, 7")
        e(f"s_add_u32 {sT0}, {sT0}, {TS_G}")
        e(f"v_lshl_add_u32 v{vTS+1}, v0, 2, {sT0}")
        e(f"global_store_dword v{vTS+1}, v{vTS}, {sWS}")

vTAG, vWT, vFL, vONE, vG = 6, 7, 8, 9, 3
vRO, vFP = 117, 118

def tag4(r):
    for k in range(4):
        e(f"v_and_or_b32 v{r+k}, v{r+k}, {sMSK}, v{vTAG}")
def pub(name, addr, r, allow_plain):
    if allow_plain:
        e(f"s_cmp_lg_u32 {sFAST}, 0")
        e(f"s_cbranch_scc1 {name}_wt")
        e(f"global_store_dwordx4 v{addr}, {vr(r,4)}, {sWS}")
        e(f"s_branch {name}_ok")
        lab(f"{name}_wt")
    e(f"global_store_dwordx4 v{addr}, {vr(r,4)}, {sWS} sc1")
    lab(f"{name}_ok")
def an_load(): e(f"s_load_dwordx8 s[{AN}:{AN+7}], {sDBG}, {sDO} glc")
def an_diff(dst, want, mask):
    for k in range(8): e(f"s_xor_b32 s{AN+k}, s{AN+k}, {want}")
    e(f"s_or_b64 s[{AN}:{AN+1}], s[{AN}:{AN+1}], s[{AN+2}:{AN+3}]")
    e(f"s_or_b64 s[{AN+4}:{AN+5}], s[{AN+4}:{AN+5}], s[{AN+6}:{AN+7}]")
    e(f"s_or_b64 s[{AN}:{AN+1}], s[{AN}:{AN+1}], s[{AN+4}:{AN+5}]")
    e(f"s_or_b32 {dst}, s{AN}, s{AN+1}")
    e(f"s_and_b32 {dst}, {dst}, {mask}")
def republish(name):
    e(f"s_cmp_lg_u32 {sDONE}, 0")
    e(f"s_cbranch_scc1 {name}")
    e(f"s_mov_b32 {sDONE}, 1")
    e("s_mov_b64 s[58:59], exec")
    e("s_mov_b32 exec_lo, 0x00ff00ff")
    e("s_mov_b32 exec_hi, 0x00ff00ff")
    e(f"global_store_dwordx4 v116, {vr(112,4)}, {sWS} sc1")
    e("s_mov_b64 exec, s[58:59]")
    lab(name)
def arrive(f):
    e("s_mov_b64 exec, 1")
    e(f"ds_add_u32 v{vFL}, v{vONE} offset:{f}")
    e("s_mov_b64 exec, -1")
def wait_flag(name, f, thr, sleep=0):
    if sleep:
        e(f"s_branch {name}")
        lab(name + "_z")
        e(f"s_sleep {sleep}")
    lab(name)
    e(f"ds_read_b32 v1, v{vFL} offset:{f}")
    e("s_waitcnt lgkmcnt(0)")
    e(f"v_readfirstlane_b32 {sT0}, v1")
    e(f"s_cmp_lt_u32 {sT0}, {thr}")
    e(f"s_cbranch_scc1 {name}" + ("_z" if sleep else ""))
def poll(name, loads, regs, tmp, sleep, issued=True, tags=None, onfail=None, dup=None, first=0):
    if issued:
        e(f"s_waitcnt vmcnt({first})")
        e(f"s_branch {name}_chk")
    lab(f"{name}_poll")
    loads()
    e("s_waitcnt vmcnt(0)")
    lab(f"{name}_chk")
    for n, r in enumerate(regs): e(f"v_xor_b32 v{r}, {tags[n] if tags else sTAG}, v{r}")
    e(f"v_or3_b32 v{tmp}, v{regs[0]}, v{regs[1]}, v{regs[2]}")
    rest = regs[3:]
    while len(rest) >= 2:
        e(f"v_or3_b32 v{tmp}, v{tmp}, v{rest[0]}, v{rest[1]}"); rest = rest[2:]
    if rest: e(f"v_or_b32 v{tmp}, v{tmp}, v{rest[0]}")
    e(f"v_and_b32 v{tmp}, 0xff, v{tmp}")
    if dup:
        for (a, b) in dup: e(f"v_xor_b32 v{b}, v{a}, v{b}")
        e(f"v_or3_b32 v{tmp}, v{tmp}, v{dup[0][1]}, v{dup[1][1]}")
    e(f"s_add_u32 {sSPIN}, {sSPIN}, 1")
    e(f"s_cmp_gt_u32 {sSPIN}, {SPIN_MAX}")
    e(f"v_or_b32_dpp v{tmp}, v{tmp}, v{tmp} quad_perm:[1,0,3,2] row_mask:0xf bank_mask:0xf")
    e(f"s_cbranch_scc1 {name}_done")
    e("s_nop 0")
    e(f"v_or_b32_dpp v{tmp}, v{tmp}, v{tmp} quad_perm:[2,3,0,1] row_mask:0xf bank_mask:0xf")
    e(f"v_cmp_ne_u32 vcc, 0, v{tmp}")
    e(f"s_cbranch_vccz {name}_done")
    e("s_mov_b64 exec, vcc")
    if onfail: onfail()
    if sleep: e(f"s_sleep {sleep}")
    e(f"s_branch {name}_poll")
    lab(f"{name}_done")
    e("s_mov_b64 exec, -1")
def round2(a, b, t):
    e(f"v_cvt_pk_bf16_f32 v{t}, v{a}, v{b}")
    e(f"v_lshlrev_b32 v{a}, 16, v{t}")
    e(f"v_and_b32 v{b}, 0xffff0000, v{t}")
def round1(a):
    e(f"v_cvt_pk_bf16_f32 v{a}, v{a}, v{a}")
    e(f"v_lshlrev_b32 v{a}, 16, v{a}")
def fold4(r):
    e("s_nop 1")
    e(f"v_permlane32_swap_b32 v{r}, v{r+2}")
    e(f"v_permlane32_swap_b32 v{r+1}, v{r+3}")
    e(f"v_add_f32 v{r}, v{r}, v{r+2}")
    e(f"v_add_f32 v{r+1}, v{r+1}, v{r+3}")
    e("s_nop 1")
    e(f"v_permlane16_swap_b32 v{r}, v{r+1}")
    e(f"v_add_f32 v{r}, v{r}, v{r+1}")

hdr = open(f"cdna_kernels/{NAME}.s.ref").read().split("; Override launch geometry")[0]
L.append(hdr.rstrip("\n"))
L.append(f"; @launch grid=(256,1,1) block=({NWAVES*64},1,1) lds={LDS_BYTES}")
L.append('.amdgcn_target "amdgcn-amd-amdhsa--gfx950"')
L.append(".text")
L.append(f".globl {NAME}_kernel")
L.append(".p2align 8")
L.append(f".type {NAME}_kernel,@function")
lab(f"{NAME}_kernel")
if PROFILE: e("s_memrealtime s[48:49]")
e("s_cmp_ge_u32 s2, 256")
e("s_cbranch_scc1 L_end")
e("s_load_dwordx16 s[4:19], s[0:1], 0")
e("s_load_dwordx4 s[20:23], s[0:1], 64")
e("s_load_dwordx2 s[24:25], s[0:1], 80")
e("s_getpc_b64 s[38:39]")
e("v_lshrrev_b32 v1, 6, v0")
e("v_and_b32 v0, 63, v0")
e(f"s_and_b32 {sKVH}, s2, 7")
e(f"v_readfirstlane_b32 {sW}, v1")
e(f"s_lshr_b32 {sR}, s2, 3")
e(f"s_lshr_b32 {sHI}, s2, 5")
e(f"s_and_b32 {sLO}, {sR}, 3")
e(f"s_lshl_b32 {sHG}, {sKVH}, 2")
e(f"s_add_u32 {sHG}, {sHG}, {sLO}")
e(f"s_min_u32 {sRB}, {sHG}, 27")
if PROFILE: e(f"v_mov_b32 v{vTS}, 0")
e(f"v_lshrrev_b32 v{vG}, 4, v0")
e(f"v_mov_b32 v{vFL}, {FL_L}")
e(f"v_mov_b32 v{vONE}, 1")
c("waves: loaders first, then the helper, then eight compute waves")
e(f"s_add_u32 {sW}, {sW}, 8")
e(f"s_cmp_lt_u32 {sW}, {8+NLD}")
e("s_cbranch_scc1 L_ld")
e(f"s_cmp_eq_u32 {sW}, {8+NLD}")
e("s_cbranch_scc1 L_hp")
e(f"s_sub_u32 {sW}, {sW}, {9+NLD}")
e(f"s_lshl_b32 {sT0}, {sW}, 10")
e(f"v_lshl_add_u32 v10, v0, 4, {sT0}")
e("s_waitcnt lgkmcnt(0)")
if ABL != 1: e(f"global_load_dwordx4 v[16:19], v10, {sX} nt")
if ABL not in (1, 2): e(f"s_load_dword {sEP}, {sWS}, {EP_G}")
e("s_branch L_c")

lab("L_ld")
PER = 4 // NLD
sLD = sT5
e("s_setprio 3")
e(f"s_sub_u32 {sLD}, {sW}, 8")
c("weight tiles: row = l>>3, source byte = ((l&7) ^ ((l>>3)&2)) * 16, odd instructions flip byte bit 6")
e("v_lshrrev_b32 v4, 3, v0")
e("v_and_b32 v5, 7, v0")
e("v_and_b32 v1, 2, v4")
e("v_xor_b32 v5, v5, v1")
e("v_lshlrev_b32 v5, 4, v5")
if NLD == 2:
    e(f"s_lshl_b32 {sT0}, {sLD}, 3")
    e(f"v_add_u32 v4, {sT0}, v4")
    e(f"s_lshl_b32 {sT0}, {sLD}, 6")
    e(f"v_xor_b32 v5, {sT0}, v5")
def odd(r, step):
    if NLD == 1:
        e(f"v_add_u32 v{r+1}, {step}, v{r}")
        e(f"v_xor_b32 v{r+1}, 64, v{r+1}")
e(f"s_lshl_b32 {sT0}, {sLO}, 20")
e(f"s_lshl_b32 {sT1}, {sKVH}, 10")
e(f"s_add_u32 {sT0}, {sT0}, {sT1}")
e(f"s_lshl_b32 {sT3}, {sHI}, 7")
e(f"s_add_u32 {sT0}, {sT0}, {sT3}")
e("v_lshl_add_u32 v10, v4, 13, v5")
e(f"v_add_u32 v10, {sT0}, v10")
odd(10, "0x10000")
e(f"s_mul_i32 {sT0}, {sHI}, {64*3584}")
e(f"s_lshl_b32 {sT1}, {sRB}, 7")
e(f"s_add_u32 {sT0}, {sT0}, {sT1}")
e("v_mul_u32_u24 v12, 3584, v4")
e(f"v_add3_u32 v12, v12, v5, {sT0}")
odd(12, 8*3584)
c("K / V source offsets (swizzled inside each 256-byte row)")
e(f"s_lshl_b32 {sT1}, {sHI}, 3")
e(f"s_add_u32 {sT1}, {sT1}, {sKVH}")
e(f"s_lshl_b32 {sT1}, {sT1}, 20")
e(f"s_lshl_b32 {sT2}, {sLO}, 16")
e(f"s_add_u32 {sT1}, {sT1}, {sT2}")
e(f"s_add_u32 {sT1}, {sT1}, {768*1024}")
e("v_and_b32 v1, 15, v0")
e(f"v_lshl_add_u32 v2, v{vG}, 8, {sT1}")
e(f"v_xor_b32 v20, v1, v{vG}")
e("v_lshl_add_u32 v20, v20, 4, v2")
e(f"v_lshlrev_b32 v14, 1, v{vG}")
e("v_xor_b32 v14, v1, v14")
e("v_lshl_add_u32 v14, v14, 4, v2")
e("v_xor_b32 v21, 64, v20")
e("v_xor_b32 v22, 128, v20")
e("v_xor_b32 v23, 192, v20")
e("v_xor_b32 v15, 128, v14")
c("workgroups of one XCD start on different HBM stacks (4 KB interleave): rotate the key groups")
sROT = "s52"
e(f"s_lshl_b32 {sROT}, {sHI}, 12")
e("s_waitcnt lgkmcnt(0)")
ts(7)
c("early weights, interleaved with the first K groups (one XCD's wq columns live on few channels)")
seq = []
nk = 0
for i in range(16):
    seq.append(("q", i))
    if i & 1: seq.append(("1", i // 2))
    for _ in range(EK if i < 15 else 0):
        seq.append(("k", nk)); nk += 1
E_LAST = len(seq) - 1
while nk % 4: seq.append(("k", nk)); nk += 1
G0 = nk // 4
for idx, (kind, n) in enumerate(seq):
    if idx == NS[0]: e("s_barrier")
    if kind == "k" and n % 4 == 0:
        e(f"s_add_u32 s50, s6, {sROT}")
        e("s_addc_u32 s51, s7, 0")
        e(f"s_add_u32 {sROT}, {sROT}, 4096")
        e(f"s_and_b32 {sROT}, {sROT}, 0xffff")
    m0v = {"q": W_L + WA_O + n*1024, "1": W_L + WB_O + n*1024, "k": (n // 4) * 4096}[kind]
    e(f"s_mov_b32 m0, {m0v}")
    e(f"s_waitcnt vmcnt({NS[0]-1})" if idx >= NS[0] else "s_nop 0")
    if kind == "k":
        e(f"global_load_lds_dwordx4 v{20 + n % 4}, s[50:51] offset:{(n % 4)*1024} nt")
    else:
        r = (10 if kind == "q" else 12) + (n & 1)
        e(f"global_load_lds_dwordx4 v{r}, {sWQ if kind == 'q' else sW1} nt")
        e(f"v_add_u32 v{r}, {'0x20000' if kind == 'q' else 16*3584}, v{r}")
if len(seq) <= NS[0]: e("s_barrier")
E_AFTER = len(seq) - 1 - E_LAST
e(f"s_mov_b32 m0, {G0*4096}")
ts(1)
def stream_loop(name, base, regs, ngroups, n):
    lo, hi = base[2:-1].split(":")
    if ngroups > 1:
        e(f"s_mov_b32 {sT0}, {ngroups}")
        lab(name)
    e(f"s_add_u32 s50, s{lo}, {sROT}")
    e(f"s_addc_u32 s51, s{hi}, 0")
    for k in range(PER):
        e(f"s_waitcnt vmcnt({n-1})")
        e(f"global_load_lds_dwordx4 v{regs[k]}, s[50:51] offset:{k*1024} nt")
    e(f"s_add_u32 {sROT}, {sROT}, 4096")
    e(f"s_and_b32 {sROT}, {sROT}, 0xffff")
    e("s_add_u32 m0, m0, 4096")
    if ngroups > 1:
        e(f"s_sub_u32 {sT0}, {sT0}, 1")
        e(f"s_cmp_lg_u32 {sT0}, 0")
        e(f"s_cbranch_scc1 {name}")
def loader_stream(var, NS):
    NG = [NS[g // 8] // NLD for g in range(32)]
    NLW = NS[4] // NLD
    sig = {}
    sig.setdefault(GP-1, []).append(F_GO)
    pend = [(G0 - E_AFTER/4, F_S0), (16, F_KL), (28, F_V5), (30, F_V6)]
    for g in range(G0, 32):
        while pend and PER*g + PER - NG[g] >= PER*pend[0][0]:
            sig.setdefault(g, []).append(pend.pop(0)[1])
    g = G0
    assert GP > G0
    while g < 32:
        h = g
        while h + 1 < 32 and h not in sig and NG[h+1] == NG[g] and (h+1) != 16: h += 1
        stream_loop(f"L_g{var}_{g}", sK if g < 16 else sV, [20,21,22,23] if g < 16 else [14,14,15,15], h - g + 1, NG[g])
        for f in sig.get(h, []):
            arrive(f)
            if f == F_S0: ts(6)
        if h == 15: ts(2)
        g = h + 1
    ts(3)
    c("late weights into the (now free) weight area; 8-row blocks in rotated order")
    e("v_lshl_add_u32 v1, v4, 10, v5")
    e(f"s_lshl_b32 {sT1}, {sHG}, 17")
    e(f"s_add_u32 {sT1}, {sT1}, {sT3}")
    e(f"v_add_u32 v10, {sT1}, v1")
    e(f"s_lshl_b32 {sT1}, {sRB}, 16")
    e(f"s_add_u32 {sT1}, {sT1}, {sT3}")
    e(f"v_add_u32 v12, {sT1}, v1")
    if WROT: e(f"s_and_b32 {sROT}, {sHI}, 3")
    else: e(f"s_mov_b32 {sROT}, 0")
    e(f"s_and_b32 {sT1}, {sROT}, 1")
    e(f"s_lshl_b32 {sT1}, {sT1}, 6")
    e(f"v_xor_b32 v10, {sT1}, v10")
    e(f"v_xor_b32 v12, {sT1}, v12")
    e("v_xor_b32 v11, 64, v10")
    e("v_xor_b32 v13, 64, v12")
    e(f"s_lshl_b32 {sROT}, {sROT}, 13")
    if ABL not in (1, 2): wait_flag(f"L_wfree{var}", F_WF, 8)
    pend.append((32, None))
    NLATE = 24 // NLD
    for i in range(NLATE):
        e(f"s_waitcnt vmcnt({NLW-1})")
        bar = False
        while pend and 32*PER + i + 1 - NLW >= PER*pend[0][0]:
            f = pend.pop(0)[1]
            if f is None: bar = True
            else: arrive(f)
        lo_, hi_ = (sWO if i < 16 else sW2)[2:-1].split(":")
        e(f"s_and_b32 {sT1}, {sROT}, {0x1ffff if i < 16 else 0xffff:#x}")
        e(f"s_add_u32 s50, s{lo_}, {sT1}")
        e(f"s_addc_u32 s51, s{hi_}, 0")
        e(f"s_lshr_b32 {sT1}, {sT1}, 3")
        e(f"s_add_u32 m0, {sT1}, {W_L + (WA_O if i < 16 else WB_O)}")
        e(f"s_add_u32 {sROT}, {sROT}, 0x2000")
        e(f"global_load_lds_dwordx4 v{(10 if i < 16 else 12) + (i & 1)}, s[50:51] nt")
        if bar: e("s_barrier")
    ts(4)
    for (grp, f) in pend:
        e(f"s_waitcnt vmcnt({32*PER + NLATE - PER*grp})")
        if f is None: e("s_barrier")
        else: arrive(f)
    e("s_waitcnt vmcnt(0)")
    ts(5)
    dbg_loader()
    e("s_barrier")
    e("s_branch L_fin")

if NS2:
    e(f"s_lshr_b32 {sT0}, {ASYM:#x}, {sKVH}")
    e(f"s_and_b32 {sT0}, {sT0}, 1")
    e("s_cbranch_scc1 L_var1")
loader_stream(0, NS)
if NS2:
    lab("L_var1")
    loader_stream(1, NS2)

lab("L_hp")
e(f"v_lshl_add_u32 v1, v0, 2, v{vFL}")
e("v_mov_b32 v2, 0")
e("s_mov_b64 exec, 0xffff")
e("ds_write_b32 v1, v2")
e("s_mov_b64 exec, -1")
if TLBW:
    e(f"s_lshl_b32 {sT1}, {sHI}, 3")
    e(f"s_add_u32 {sT1}, {sT1}, {sKVH}")
    e(f"s_lshl_b32 {sT1}, {sT1}, 20")
    e(f"s_lshl_b32 {sT2}, {sLO}, 16")
    e(f"s_add_u32 {sT1}, {sT1}, {sT2}")
    e(f"s_lshl_b32 {sT2}, {sHG}, 17")
    e(f"s_lshl_b32 {sT3}, {sRB}, 16")
e("s_waitcnt lgkmcnt(0)")
if TLBW:
    c("first touch of every page this workgroup streams from later, while memory is still quiet")
    e(f"s_load_dword s76, {sK}, {sT1} offset:{768*1024}")
    e(f"s_load_dword s77, {sV}, {sT1} offset:{768*1024}")
    e(f"s_load_dword s78, {sWO}, {sT2}")
    e(f"s_load_dword s79, {sW2}, {sT3}")
e("s_barrier")
if ABL in (1, 2): e("s_branch L_fin")
c("warm L2: two lines of this kernel's code, the output page, this workgroup's stats line")
e(f"s_lshl_b32 {sT0}, {sR}, 8")
e(f"s_load_dword s72, s[38:39], {sT0}")
e(f"s_load_dword s73, s[38:39], {sT0} offset:128")
e(f"s_load_dword s74, {sOUT}, 0")
if PRE_O or PRE_F:
    c("lanes 0-15: the o lines this workgroup publishes into; lanes 16-31: the lines its final reduction polls")
    e(f"s_lshl_b32 {sT0}, {sKVH}, 16")
    e(f"s_lshl_b32 {sT1}, {sR}, 9")
    e(f"s_add_u32 {sT1}, {sT1}, {sT0}")
    e(f"s_add_u32 {sT1}, {sT1}, {OG_G}")
    e("v_bfe_u32 v1, v0, 2, 2")
    e("v_and_b32 v2, 3, v0")
    e("v_lshlrev_b32 v2, 7, v2")
    e("v_lshl_add_u32 v1, v1, 14, v2")
    e(f"v_add_u32 v10, {sT1}, v1")
    e(f"s_lshl_b32 {sT0}, {sHG}, 14")
    e(f"s_lshl_b32 {sT1}, {sHI}, 11")
    e(f"s_add_u32 {sT0}, {sT0}, {sT1}")
    e(f"s_add_u32 {sT0}, {sT0}, {FG_G - 2048}")
    e("s_mov_b64 exec, 0xffff0000")
    e(f"v_lshl_add_u32 v10, v0, 7, {sT0}")
    e("s_mov_b64 exec, -1")
    wait_flag("L_hwf", [F_GO, F_KL, F_V5][PRE_AT], NLD, sleep=8)
    e(f"s_mov_b32 exec_lo, {(0xffff if PRE_O else 0) | (0xffff0000 if PRE_F else 0):#x}")
    e("s_mov_b32 exec_hi, 0")
    e(f"global_load_dword v11, v10, {sWS} sc1 nt")
    e("s_waitcnt vmcnt(0)")
    e("s_mov_b64 exec, -1")
e("s_waitcnt lgkmcnt(0)")
ts(3)
e("s_branch L_fin")

lab("L_c")
e(f"s_and_b32 {sCT}, {sW}, 3")
c("reducer output offset: b*512 + hg*16 + (l&3)*4 + (l>>4)")
e("v_and_b32 v1, 3, v0")
e(f"v_lshl_add_u32 v1, v1, 2, v{vG}")
e(f"s_lshl_b32 {sT0}, {sHI}, 9")
e(f"s_lshl_b32 {sT1}, {sHG}, 4")
e(f"s_add_u32 {sT0}, {sT0}, {sT1}")
e(f"v_add_lshl_u32 v{vRO}, v1, {sT0}, 1")
c("weight transpose-read address")
e("v_bfe_u32 v2, v0, 2, 2")
e(f"v_lshl_add_u32 v1, v{vG}, 3, v2")
e("v_bfe_u32 v2, v0, 3, 2")
e(f"v_xor_b32 v2, {sCT}, v2")
e("v_lshlrev_b32 v2, 5, v2")
e("v_lshl_add_u32 v1, v1, 7, v2")
e("v_and_b32 v2, 3, v0")
e("v_lshl_add_u32 v1, v2, 3, v1")
e(f"v_add_u32 v{vWT}, {W_L}, v1")
c("xn write addresses / masks, xn fragment address, publish address")
e(f"s_mul_i32 {sT0}, {sW}, {XN_S}")
e(f"s_add_u32 {sT0}, {sT0}, {XN_L}")
e("v_and_b32 v2, 15, v0")
e(f"v_lshl_add_u32 v10, v2, 4, {sT0}")
e("v_and_b32 v1, 7, v0")
e(f"v_lshl_add_u32 v11, v1, 4, {sT0}")
e(f"s_lshl_b32 {sT0}, {sLO}, 4")
e(f"s_lshl_b64 s[50:51], 0xffff, {sT0}")
e(f"s_lshl_b32 {sT0}, {sHI}, 3")
e(f"s_lshl_b64 s[52:53], 0xff, {sT0}")
e(f"s_lshl_b32 {sT0}, {sHG}, 1")
e(f"s_lshl_b64 s[56:57], 3, {sT0}")
e(f"v_mul_u32_u24 v12, {XN_S}, v1")
e(f"v_lshl_add_u32 v12, v{vG}, 4, v12")
e(f"v_add_u32 v12, {XN_L}, v12")
e("v_and_b32 v14, 1, v0")
e("v_lshlrev_b32 v14, 4, v14")
e(f"v_add_u32 v14, {XR_L}, v14")
e(f"s_lshl_b32 {sT2}, {sCT}, 6")
e(f"v_lshl_add_u32 v1, v{vG}, 4, {sT2}")
e(f"s_lshl_b32 {sT0}, {sKVH}, 16")
e(f"s_lshl_b32 {sT1}, {sLO}, 11")
e(f"s_add_u32 {sT0}, {sT0}, {sT1}")
e(f"s_lshl_b32 {sT1}, {sHI}, 8")
e(f"s_add_u32 {sT0}, {sT0}, {sT1}")
e(f"s_add_u32 {sT0}, {sT0}, {QG_G}")
e(f"s_lshl_b32 {sT2}, {sRB}, 14")
e(f"s_lshl_b32 {sT1}, {sHI}, 11")
e(f"s_add_u32 {sT2}, {sT2}, {sT1}")
e(f"s_add_u32 {sT2}, {sT2}, {HG_G}")
e(f"s_cmp_lt_u32 {sW}, 4")
e(f"s_cselect_b32 {sT0}, {sT0}, {sT2}")
e(f"s_cselect_b32 {sT1}, 13, 8")
e(f"v_lshlrev_b32 v116, {sT1}, v2")
e(f"v_add3_u32 v116, v116, v1, {sT0}")
e(f"s_mov_b32 {sDONE}, 0")
e("s_barrier")
ts(1)
A, ra = 20, 28
e("s_waitcnt vmcnt(0)")
ts(2)
if ABL in (1, 2): e("s_branch L_fin")
e(f"s_cmp_lg_u32 {sW}, {sHI}")
e("s_cbranch_scc1 L_noxr")
e("s_mov_b64 exec, s[56:57]")
e("ds_write_b128 v14, v[16:19]")
e("s_mov_b64 exec, -1")
lab("L_noxr")
for k in range(4):
    e(f"v_lshlrev_b32 v{A+2*k}, 16, v{16+k}")
    e(f"v_and_b32 v{A+2*k+1}, 0xffff0000, v{16+k}")
def wave_sum():
    for m in ("quad_perm:[1,0,3,2] row_mask:0xf bank_mask:0xf", "quad_perm:[2,3,0,1] row_mask:0xf bank_mask:0xf",
              "row_half_mirror row_mask:0xf bank_mask:0xf", "row_mirror row_mask:0xf bank_mask:0xf",
              "row_bcast:15 row_mask:0xa bank_mask:0xf", "row_bcast:31 row_mask:0xc bank_mask:0xf"):
        e("s_nop 1")
        e(f"v_add_f32_dpp v{ra}, v{ra}, v{ra} {m}")
    e(f"v_mul_f32 v{ra}, 0x3b000000, v{ra}")
e(f"v_add_f32 v{ra}, v{A}, v{A+1}")
e(f"v_add_f32 v29, v{A+2}, v{A+3}")
e(f"v_add_f32 v30, v{A+4}, v{A+5}")
e(f"v_add_f32 v31, v{A+6}, v{A+7}")
e(f"v_add_f32 v{ra}, v{ra}, v29")
e("v_add_f32 v30, v30, v31")
e(f"v_add_f32 v{ra}, v{ra}, v30")
wave_sum()
e(f"v_cvt_pk_bf16_f32 v29, v{ra}, v{ra}")
e(f"v_readlane_b32 {sT0}, v{ra}, 63")
e(f"v_readlane_b32 {sT2}, v29, 63")
e("s_nop 0")
for k in range(8): e(f"v_subrev_f32 v{32+k}, {sT0}, v{A+k}")
e(f"s_lshl_b32 {sT2}, {sT2}, 16")
e(f"v_mul_f32 v{ra}, v32, v32")
e("v_mul_f32 v29, v33, v33")
for k in range(2, 8, 2):
    e(f"v_fmac_f32 v{ra}, v{32+k}, v{32+k}")
    e(f"v_fmac_f32 v29, v{33+k}, v{33+k}")
e(f"v_add_f32 v{ra}, v{ra}, v29")
wave_sum()
round1(ra)
e(f"v_add_f32 v{ra}, 0x3727c5ac, v{ra}")
round1(ra)
e(f"v_sqrt_f32 v{ra}, v{ra}")
for k in range(8): e(f"v_subrev_f32 v{A+k}, {sT2}, v{A+k}")
round1(ra)
e(f"v_rcp_f32 v29, v{ra}")
for k in range(4): round2(A+2*k, A+2*k+1, 30 + (k & 1))
e(f"v_readlane_b32 {sT0}, v{ra}, 63")
e(f"v_readlane_b32 {sT4}, v29, 63")
e("s_nop 1")
for k in range(8): e(f"v_mul_f32 v{32+k}, {sT4}, v{A+k}")
for k in range(8): e(f"v_fma_f32 v{A+k}, -v{32+k}, {sT0}, v{A+k}")
for k in range(8): e(f"v_fma_f32 v{32+k}, v{A+k}, {sT4}, v{32+k}")
for k in range(4): e(f"v_cvt_pk_bf16_f32 v{16+k}, v{32+2*k}, v{33+2*k}")
e("s_mov_b64 exec, s[50:51]")
e("ds_write_b128 v10, v[16:19]")
e("s_mov_b64 exec, s[52:53]")
e("ds_write_b128 v11, v[16:19] offset:256")
arrive(F_S0)
e("s_waitcnt lgkmcnt(0)")
ts(3)
e(f"s_add_u32 {sEP}, {sEP}, 1")
e(f"s_and_b32 {sTAG}, {sEP}, 0xff")
e(f"s_cselect_b32 {sT0}, 0, 1")
e(f"s_add_u32 {sEP}, {sEP}, {sT0}")
e(f"s_add_u32 {sTAG}, {sTAG}, {sT0}")
e(f"s_mov_b32 {sMSK}, 0xffffff00")
e(f"v_mov_b32 v{vTAG}, {sTAG}")
c("q partials also carry the producer's XCC id, one bit per dword (bit 8)")
e(f"s_getreg_b32 {sT1}, hwreg(HW_REG_XCC_ID, 0, 4)")
for k, sx in enumerate(sXT):
    e(f"s_lshl_b32 {sx}, {sT1}, {8-k}")
    e(f"s_and_b32 {sx}, {sx}, 0x100")
    e(f"s_or_b32 {sx}, {sx}, {sTAG}")
e("v_mov_b32 v60, 0xfffffe00")
wait_flag("L_s0", F_S0, 8 + NLD, sleep=1)
ts(5)
e(f"s_cmp_ge_u32 {sW}, 4")
e("s_cbranch_scc1 L_hproj")
for s in range(4):
    e(f"ds_read_b64_tr_b16 {vr(24+4*s,2)}, v{vWT} offset:{WA_O + s*4096}")
    e(f"ds_read_b64_tr_b16 {vr(26+4*s,2)}, v{vWT} offset:{WA_O + s*4096 + 512}")
    e(f"ds_read_b128 {vr(40+4*s,4)}, v12 offset:{s*64}")
for s in range(4):
    e(f"s_waitcnt lgkmcnt({9-3*s})")
    e(f"v_mfma_f32_16x16x32_bf16 {vr(112,4)}, {vr(24+4*s,4)}, {vr(40+4*s,4)}, " + ("0" if s == 0 else vr(112,4)))
e("s_mov_b32 exec_lo, 0x00ff00ff")
e("s_mov_b32 exec_hi, 0x00ff00ff")
e("s_nop 5")
for k, sx in enumerate(sXT):
    e(f"v_and_or_b32 v{112+k}, v{112+k}, v60, {sx}")
e("s_branch L_pub")
lab("L_hproj")
for s in range(2):
    e(f"ds_read_b64_tr_b16 {vr(24+4*s,2)}, v{vWT} offset:{WB_O + s*4096}")
    e(f"ds_read_b64_tr_b16 {vr(26+4*s,2)}, v{vWT} offset:{WB_O + s*4096 + 512}")
    e(f"ds_read_b128 {vr(40+4*s,4)}, v12 offset:{256 + s*64}")
for s in range(2):
    e(f"s_waitcnt lgkmcnt({3-3*s})")
    e(f"v_mfma_f32_16x16x32_bf16 {vr(112,4)}, {vr(24+4*s,4)}, {vr(40+4*s,4)}, " + ("0" if s == 0 else vr(112,4)))
e(f"s_cmp_eq_u32 {sKVH}, 7")
e(f"s_cselect_b32 {sDONE}, 1, 0")
e("s_cbranch_scc1 L_pq_ok")
e("s_mov_b32 exec_lo, 0x00ff00ff")
e("s_mov_b32 exec_hi, 0x00ff00ff")
e("s_nop 5")
tag4(112)
lab("L_pub")
c("optimistic: visible through the shared L2; repeated write-through below unless the whole group shares this XCD")
e(f"global_store_dwordx4 v116, {vr(112,4)}, {sWS}")
lab("L_pq_ok")
arrive(F_WF)
ts(6)
if ABL == 3: e("s_branch L_fin")
e("v_and_b32 v2, 15, v0")
e(f"v_lshlrev_b32 v1, 11, v{vG}")
e("v_lshl_add_u32 v1, v2, 4, v1")
e(f"s_lshl_b32 {sT0}, {sKVH}, 16")
e(f"s_lshl_b32 {sT1}, {sHI}, 13")
e(f"s_add_u32 {sT0}, {sT0}, {sT1}")
e(f"s_lshl_b32 {sT1}, {sW}, 8")
e(f"s_add_u32 {sT0}, {sT0}, {sT1}")
e(f"s_add_u32 {sT0}, {sT0}, {QG_G}")
e(f"v_add_u32 v10, {sT0}, v1")
e(f"s_lshl_b32 {sT0}, {sRB}, 14")
e(f"s_add_u32 {sT0}, {sT0}, {sT1}")
e(f"s_add_u32 {sT0}, {sT0}, {HG_G}")
e(f"v_add_u32 v11, {sT0}, v1")
e("v_add_u32 v12, 0x2000, v11")
e(f"v_lshlrev_b32 v1, 1, v{vG}")
e("v_lshl_add_u32 v1, v2, 3, v1")
e(f"s_lshr_b32 {sT0}, {sW}, 1")
e(f"s_mul_i32 {sT0}, {sT0}, {QL_S}")
e(f"s_and_b32 {sT1}, {sW}, 1")
e(f"s_lshl_b32 {sT1}, {sT1}, 7")
e(f"s_add_u32 {sT0}, {sT0}, {sT1}")
e(f"s_add_u32 {sT0}, {sT0}, {QL_L}")
e(f"v_add_u32 v13, {sT0}, v1")
e(f"s_mul_i32 {sT0}, {sW}, {HL_S}")
e(f"s_add_u32 {sT0}, {sT0}, {HL_L}")
e(f"v_add_u32 v16, {sT0}, v1")
e(f"v_xor_b32 v1, v{vG}, v2")
e("v_lshlrev_b32 v1, 4, v1")
e("v_lshl_add_u32 v1, v2, 8, v1")
e(f"s_lshl_b32 {sT0}, {sW}, 13")
e(f"v_add_u32 v20, {sT0}, v1")
e("v_xor_b32 v21, 64, v20")
e("v_xor_b32 v22, 128, v20")
e("v_xor_b32 v23, 192, v20")
e("v_and_b32 v1, 3, v0")
e(f"v_mul_u32_u24 v17, {QL_S}, v1")
e(f"v_lshl_add_u32 v17, v{vG}, 4, v17")
e(f"v_add_u32 v17, {QL_L}, v17")
e("v_lshlrev_b32 v18, 5, v1")
e(f"v_add_u32 v18, {MX_L}, v18")
e(f"s_lshl_b32 {sT0}, {sW}, 2")
e(f"v_add_u32 v19, {sT0}, v18")
e(f"v_mul_u32_u24 v2, {PL_S}, v1")
e(f"v_lshl_add_u32 v{vFP}, v{vG}, 4, v2")
e(f"v_add_u32 v{vFP}, {PL_L}, v{vFP}")
e("v_lshrrev_b32 v1, 2, v0")
e("v_lshl_add_u32 v2, v1, 1, v2")
e(f"s_lshl_b32 {sT0}, {sW}, 6")
e(f"s_add_u32 {sT0}, {sT0}, {PL_L}")
e(f"v_add_u32 v119, {sT0}, v2")
e(f"s_mov_b32 {sSPIN}, 0")
wait_flag("L_gp", F_GO, NLD, sleep=2)
ts(7)
def q_loads(): e(f"global_load_dwordx4 {vr(24,4)}, v10, {sWS} sc1 nt")
def h_loads():
    e(f"global_load_dwordx4 {vr(28,4)}, v11, {sWS} sc1 nt")
    e(f"global_load_dwordx4 {vr(32,4)}, v12, {sWS} sc1 nt")
def q_fail():
    c("still missing after a few rounds: assume a peer on another XCD; everyone here republishes write-through")
    e(f"s_cmp_lg_u32 {sSPIN}, {RQ}")
    e("s_cbranch_scc1 L_qf1")
    e("v_mov_b32 v36, 0x10000")
    e(f"ds_or_b32 v{vFL}, v36 offset:{F_S1}")
    lab("L_qf1")
    e(f"ds_read_b32 v1, v{vFL} offset:{F_S1}")
    e("s_waitcnt lgkmcnt(0)")
    e(f"v_readfirstlane_b32 {sT0}, v1")
    e(f"s_cmp_lt_u32 {sT0}, 0x10000")
    e("s_cbranch_scc1 L_qf2")
    republish("L_qf2")
c("a few staggered looks in flight; the first complete one wins")
for k in range(QTRY - 1):
    e(f"global_load_dwordx4 {vr(128+4*k,4)}, v10, {sWS} sc1 nt")
    e(f"s_sleep {QGAP}")
e(f"global_load_dwordx4 {vr(128+4*(QTRY-1),4)}, v10, {sWS} sc1 nt")
h_loads()
for k in range(QTRY):
    e(f"s_waitcnt vmcnt({QTRY - 1 - k + 2})")
    for n in range(4): e(f"v_xor_b32 v{24+n}, {sXT[n]}, v{128+4*k+n}")
    e("v_or3_b32 v36, v24, v25, v26")
    e("v_or_b32 v36, v36, v27")
    e("v_and_b32 v36, 0xff, v36")
    e("v_cmp_ne_u32 vcc, 0, v36")
    if PROFILE: e(f"v_writelane_b32 v{vTS}, {k+1}, 23")
    e("s_cbranch_vccz L_q_got")
poll("L_q", q_loads, [24,25,26,27], 36, SLP_Q, issued=False, tags=sXT, onfail=q_fail)
if PROFILE: e(f"v_writelane_b32 v{vTS}, 10, 23")
h_loads()
lab("L_q_got")
e("v_or3_b32 v36, v24, v25, v26")
e("v_or_b32 v36, v36, v27")
e("v_and_b32 v36, 0x100, v36")
e("v_cmp_ne_u32 vcc, 0, v36")
for k in range(4): e(f"v_and_b32 v{24+k}, v60, v{24+k}")
e("s_cmp_lg_u64 vcc, 0")
e(f"s_cselect_b32 {sT1}, 0x10001, 1")
e(f"v_mov_b32 v36, {sT1}")
fold4(24)
e("v_cvt_pk_bf16_f32 v24, v24, v24")
e("ds_write_b16 v13, v24")
e("s_mov_b64 exec, 1")
e(f"ds_add_u32 v{vFL}, v36 offset:{F_S1}")
e("s_mov_b64 exec, -1")
ts(8)
if ABL == 4: e("s_branch L_fin")
KF, QF = 40, 72
wait_flag("L_kl", F_KL, NLD, sleep=2)
for t in range(2):
    for s in range(4):
        e(f"ds_read_b128 {vr(KF+16*t+4*s,4)}, v{20+s} offset:{t*4096}")
lab("L_s1")
e(f"ds_read_b32 v1, v{vFL} offset:{F_S1}")
e("s_waitcnt lgkmcnt(0)")
e(f"v_readfirstlane_b32 {sT1}, v1")
e(f"s_lshr_b32 {sFAST}, {sT1}, 16")
e("s_cbranch_scc0 L_s1b")
republish("L_s1b")
e(f"s_and_b32 {sT0}, {sT1}, 0xffff")
e(f"s_cmp_lt_u32 {sT0}, 8")
e("s_cbranch_scc1 L_s1")
ts(9)
for s in range(4): e(f"ds_read_b128 {vr(QF+4*s,4)}, v17 offset:{s*64}")
for s in range(4):
    e(f"s_waitcnt lgkmcnt({3-s})")
    for t in range(2):
        e(f"v_mfma_f32_16x16x32_bf16 {vr(88+4*t,4)}, {vr(KF+16*t+4*s,4)}, {vr(QF+4*s,4)}, " + ("0" if s == 0 else vr(88+4*t,4)))
e("s_nop 7")
for k in range(1, 4):
    e(f"v_mov_b32_dpp v88, v{88+k} quad_perm:[0,1,2,3] row_mask:0xf bank_mask:{1<<k:#x}")
    e(f"v_mov_b32_dpp v92, v{92+k} quad_perm:[0,1,2,3] row_mask:0xf bank_mask:{1<<k:#x}")
    if k < 3: e("s_nop 0")
c("scores: bf16(bf16(qk) * scale)")
round2(88, 92, 89)
e("v_mul_f32 v88, 0x3db504f3, v88")
e("v_mul_f32 v92, 0x3db504f3, v92")
round2(88, 92, 89)
e("v_max_f32 v90, v88, v92")
e("s_nop 1")
e("v_max_f32_dpp v90, v90, v90 row_ror:4 row_mask:0xf bank_mask:0xf")
e("s_nop 1")
e("v_max_f32_dpp v90, v90, v90 row_ror:8 row_mask:0xf bank_mask:0xf")
e("v_mov_b32 v91, v90")
e("s_nop 1")
e("v_permlane16_swap_b32 v90, v91")
e("v_max_f32 v90, v90, v91")
e("v_mov_b32 v91, v90")
e("s_nop 1")
e("v_permlane32_swap_b32 v90, v91")
e("v_max_f32 v90, v90, v91")
e("s_mov_b64 exec, 15")
e("ds_write_b32 v19, v90")
arrive(F_S2)
ts(10)
wait_flag("L_s2", F_S2, 8)
e(f"ds_read_b128 {vr(96,4)}, v18")
e(f"ds_read_b128 {vr(100,4)}, v18 offset:16")
e("s_waitcnt lgkmcnt(0)")
e("v_max3_f32 v96, v96, v97, v98")
e("v_max3_f32 v100, v100, v101, v102")
e("v_max3_f32 v96, v96, v99, v103")
e("v_max_f32 v96, v96, v100")
e("v_sub_f32 v88, v88, v96")
e("v_sub_f32 v92, v92, v96")
e(f"v_mul_f32 v88, {LOG2E}, v88")
e(f"v_mul_f32 v92, {LOG2E}, v92")
e("v_exp_f32 v88, v88")
e("v_exp_f32 v92, v92")
e("s_nop 0")
e("v_cvt_pk_bf16_f32 v88, v88, v92")
e("ds_write_b16 v119, v88")
e("ds_write_b16_d16_hi v119, v88 offset:32")
arrive(F_S3)
ts(11)
PF, VF, OD = 40, 72, 104
c("addresses: V transpose read, o publish, o gather, stats, o LDS write, fragments, final publish / gather")
e("v_and_b32 v1, 3, v0")
e("v_bfe_u32 v2, v0, 2, 2")
e(f"v_lshl_add_u32 v2, v{vG}, 3, v2")
e("v_bfe_u32 v10, v0, 2, 3")
e(f"v_xor_b32 v10, {sW}, v10")
e("v_lshlrev_b32 v10, 5, v10")
e("v_lshl_add_u32 v10, v2, 8, v10")
e("v_lshl_add_u32 v10, v1, 3, v10")
e(f"v_add_u32 v10, {V_L}, v10")
e(f"s_lshl_b32 {sT0}, s2, 7")
e(f"s_add_u32 {sT0}, {sT0}, {SG_G}")
e(f"v_lshl_add_u32 v14, v1, 4, {sT0}")
wait_flag("L_s3", F_S3, 8)
ts(12)
for t in range(8):
    e(f"ds_read_b128 {vr(PF+4*t,4)}, v{vFP} offset:{t*64}")
e(f"s_cmp_lg_u32 {sW}, 7")
e("s_cbranch_scc1 L_nostats")
c("wave 7: row sums of P by MFMA with ones, publish (m, l)")
for k in range(4): e(f"v_mov_b32 v{20+k}, 0x3f803f80")
e("s_waitcnt lgkmcnt(0)")
for t in range(8):
    e(f"v_mfma_f32_16x16x32_bf16 {vr(108,4)}, {vr(20,4)}, {vr(PF+4*t,4)}, " + ("0" if t == 0 else vr(108,4)))
e("v_mov_b32 v24, v96")
e("v_mov_b32 v26, v96")
e("s_mov_b64 exec, 15")
e("s_nop 4")
e("v_mov_b32 v25, v108")
e("v_mov_b32 v27, v108")
tag4(24)
pub("L_ps", 14, 24, 1)
e("s_mov_b64 exec, -1")
lab("L_nostats")
c("h: finish the gather, silu")
e(f"s_cmp_eq_u32 {sKVH}, 7")
e("s_cbranch_scc1 L_hdone")
poll("L_h", h_loads, list(range(28, 36)), 36, SLP_Q)
for k in range(4): e(f"v_add_f32 v{28+k}, v{28+k}, v{32+k}")
fold4(28)
round1(28)
e("v_mul_f32 v29, 0xbfb8aa3b, v28")
e("v_exp_f32 v29, v29")
e("s_nop 0")
e("v_add_f32 v29, 1.0, v29")
e("v_rcp_f32 v29, v29")
e("s_nop 0")
e("v_mul_f32 v28, v28, v29")
e("v_cvt_pk_bf16_f32 v28, v28, v28")
e("ds_write_b16 v16, v28")
lab("L_hdone")
e("v_and_b32 v1, 3, v0")
e(f"s_lshl_b32 {sT0}, {sKVH}, 16")
e(f"s_lshl_b32 {sT1}, {sR}, 9")
e(f"s_add_u32 {sT0}, {sT0}, {sT1}")
e(f"s_lshl_b32 {sT1}, {sW}, 6")
e(f"s_add_u32 {sT0}, {sT0}, {sT1}")
e(f"s_add_u32 {sT0}, {sT0}, {OG_G}")
e("v_lshlrev_b32 v2, 14, v1")
e(f"v_lshl_add_u32 v2, v{vG}, 4, v2")
e(f"v_add_u32 v11, {sT0}, v2")
e(f"s_lshl_b32 {sT0}, {sHG}, 14")
e(f"s_lshl_b32 {sT2}, {sW}, 11")
e(f"s_add_u32 {sT0}, {sT0}, {sT2}")
e(f"s_add_u32 {sT0}, {sT0}, {OG_G}")
e(f"v_lshl_add_u32 v12, v0, 4, {sT0}")
e("v_and_b32 v2, 31, v0")
e("v_lshrrev_b32 v15, 5, v0")
e("v_lshlrev_b32 v15, 2, v15")
e("v_lshl_add_u32 v15, v2, 3, v15")
e(f"s_mul_i32 {sT0}, {sW}, {OL_S}")
e(f"v_add_u32 v15, {sT0}, v15")
e("v_and_b32 v1, 7, v0")
e(f"v_mul_u32_u24 v16, {HL_S}, v1")
e(f"v_lshl_add_u32 v16, v{vG}, 4, v16")
e(f"v_add_u32 v16, {HL_L}, v16")
e(f"v_mul_u32_u24 v17, {OL_S}, v1")
e(f"v_lshl_add_u32 v17, v{vG}, 4, v17")
e(f"s_lshl_b32 {sT0}, {sHI}, 2")
e(f"s_add_u32 {sT0}, {sT0}, {sCT}")
e(f"s_lshl_b32 {sT0}, {sT0}, 14")
e(f"s_lshl_b32 {sT1}, {sHG}, 6")
e(f"s_add_u32 {sT0}, {sT0}, {sT1}")
e(f"s_add_u32 {sT0}, {sT0}, {FG_G}")
e("v_lshlrev_b32 v18, 11, v1")
e(f"v_lshl_add_u32 v18, v{vG}, 4, v18")
e(f"v_add_u32 v18, {sT0}, v18")
e(f"s_lshl_b32 {sT0}, {sHG}, 14")
e(f"s_lshl_b32 {sT1}, {sHI}, 11")
e(f"s_add_u32 {sT0}, {sT0}, {sT1}")
e(f"s_add_u32 {sT0}, {sT0}, {FG_G}")
e(f"v_lshl_add_u32 v19, v0, 4, {sT0}")
e(f"s_lshl_b32 {sT5}, {sW}, 12")
e(f"s_lshl_b32 {sT1}, {sKVH}, 7")
e(f"s_add_u32 {sT5}, {sT5}, {sT1}")
e(f"s_lshl_b32 {sT1}, {sLO}, 4")
e(f"s_add_u32 {sT5}, {sT5}, {sT1}")
e(f"s_add_u32 {sT5}, {sT5}, {SG_G}")
e("v_and_b32 v1, 3, v0")
e(f"v_lshl_add_u32 v13, v1, 10, {sT5}")
def pv(tiles, first):
    for n, t in enumerate(tiles):
        e(f"ds_read_b64_tr_b16 {vr(VF+4*n,2)}, v10 offset:{t*8192}")
        e(f"ds_read_b64_tr_b16 {vr(VF+4*n+2,2)}, v10 offset:{t*8192+1024}")
    for n, t in enumerate(tiles):
        e(f"s_waitcnt lgkmcnt({2*(len(tiles)-1-n)})")
        e(f"v_mfma_f32_16x16x32_bf16 {vr(OD,4)}, {vr(VF+4*n,4)}, {vr(PF+4*t,4)}, " + ("0" if first and n == 0 else vr(OD,4)))
if ABL == 5: e("s_branch L_fin")
wait_flag("L_v5", F_V5, NLD, sleep=2)
ts(13)
e(f"global_load_dwordx4 {vr(20,4)}, v13, {sWS} sc1 nt")
pv([0,1,2,3,4,5], True)
def s_loads(): e(f"global_load_dwordx4 {vr(20,4)}, v13, {sWS} sc1 nt")
def o_loads():
    e(f"global_load_dwordx4 {vr(24,4)}, v12, {sWS} sc1 nt")
    e(f"global_load_dwordx4 {vr(28,4)}, v12, {sWS} offset:1024 sc1 nt")
wait_flag("L_v6", F_V6, NLD, sleep=1)
pv([6], False)
e("s_barrier")
ts(14)
pv([7], False)
e("s_mov_b32 exec_lo, 0x000f000f")
e("s_mov_b32 exec_hi, 0x000f000f")
e("s_nop 5")
tag4(OD)
pub("L_po", 11, OD, 1)
e("s_mov_b64 exec, -1")
ts(15)
poll("L_st", s_loads, [20,21,22,23], 36, SLP_O, dup=[(20,22),(21,23)], first=1)
c("alpha[c] = exp(m_c - m) / sum_c(l_c exp(m_c - m)), c = l&3")
e("v_max_f32_dpp v22, v20, v20 quad_perm:[1,0,3,2] row_mask:0xf bank_mask:0xf")
e("s_nop 1")
e("v_max_f32_dpp v22, v22, v22 quad_perm:[2,3,0,1] row_mask:0xf bank_mask:0xf")
e("v_sub_f32 v20, v20, v22")
e(f"v_mul_f32 v20, {LOG2E}, v20")
e("v_exp_f32 v20, v20")
e("s_nop 0")
e("v_mul_f32 v21, v20, v21")
e("s_nop 1")
e("v_add_f32_dpp v21, v21, v21 quad_perm:[1,0,3,2] row_mask:0xf bank_mask:0xf")
e("s_nop 1")
e("v_add_f32_dpp v21, v21, v21 quad_perm:[2,3,0,1] row_mask:0xf bank_mask:0xf")
e("v_rcp_f32 v21, v21")
e("s_nop 0")
e("v_mul_f32 v20, v20, v21")
e("s_nop 1")
e("v_mov_b32_dpp v22, v20 quad_perm:[0,0,0,0] row_mask:0x3 bank_mask:0xf")
e("v_mov_b32_dpp v23, v20 quad_perm:[2,2,2,2] row_mask:0x3 bank_mask:0xf")
e("s_nop 0")
e("v_mov_b32_dpp v22, v20 quad_perm:[1,1,1,1] row_mask:0xc bank_mask:0xf")
e("v_mov_b32_dpp v23, v20 quad_perm:[3,3,3,3] row_mask:0xc bank_mask:0xf")
o_loads()
ts(16)
e("s_barrier")
ts(17)
WF, W2F, HF, FD = 40, 56, 64, 108
e(f"s_cmp_ge_u32 {sW}, 4")
e("s_cbranch_scc1 L_nowf")
for s in range(2):
    e(f"ds_read_b64_tr_b16 {vr(W2F+4*s,2)}, v{vWT} offset:{WB_O + s*4096}")
    e(f"ds_read_b64_tr_b16 {vr(W2F+4*s+2,2)}, v{vWT} offset:{WB_O + s*4096 + 512}")
e(f"ds_read_b128 {vr(HF,4)}, v16")
e(f"ds_read_b128 {vr(HF+4,4)}, v16 offset:64")
for s in range(4):
    e(f"ds_read_b64_tr_b16 {vr(WF+4*s,2)}, v{vWT} offset:{WA_O + s*4096}")
    e(f"ds_read_b64_tr_b16 {vr(WF+4*s+2,2)}, v{vWT} offset:{WA_O + s*4096 + 512}")
for k in range(4): e(f"v_mov_b32 v{FD+k}, 0")
lab("L_nowf")
poll("L_o", o_loads, list(range(24, 32)), 36, SLP_O)
ts(18)
for k in range(4): e(f"v_mul_f32 v{24+k}, v22, v{24+k}")
for k in range(4): e(f"v_fmac_f32 v{24+k}, v23, v{28+k}")
e("s_nop 1")
e("v_permlane32_swap_b32 v24, v26")
e("v_permlane32_swap_b32 v25, v27")
e("v_add_f32 v24, v24, v26")
e("v_add_f32 v25, v25, v27")
e("v_cvt_pk_bf16_f32 v24, v24, v25")
e("ds_write_b32 v15, v24")
e("s_waitcnt lgkmcnt(0)")
e("s_barrier")
ts(19)
e(f"s_cmp_ge_u32 {sW}, 4")
e("s_cbranch_scc1 L_fin")
OF = 72
for s in range(4): e(f"ds_read_b128 {vr(OF+4*s,4)}, v17 offset:{s*64}")
e(f"s_cmp_eq_u32 {sKVH}, 7")
e("s_cbranch_scc1 L_noffn")
e(f"v_mfma_f32_16x16x32_bf16 {vr(FD,4)}, {vr(W2F,4)}, {vr(HF,4)}, 0")
e(f"v_mfma_f32_16x16x32_bf16 {vr(FD,4)}, {vr(W2F+4,4)}, {vr(HF+4,4)}, {vr(FD,4)}")
lab("L_noffn")
for s in range(4):
    e(f"s_waitcnt lgkmcnt({3-s})")
    e(f"v_mfma_f32_16x16x32_bf16 {vr(FD,4)}, {vr(WF+4*s,4)}, {vr(OF+4*s,4)}, {vr(FD,4)}")
e("s_mov_b32 exec_lo, 0x00ff00ff")
e("s_mov_b32 exec_hi, 0x00ff00ff")
e("s_nop 5")
tag4(FD)
e(f"global_store_dwordx4 v18, {vr(FD,4)}, {sWS} sc1")
e("s_mov_b64 exec, -1")
ts(20)
e(f"s_cmp_lg_u32 {sW}, 0")
e("s_cbranch_scc1 L_fin")
c("reducer (b = hi, column tile = hg)")
e(f"v_and_b32 v1, 31, v{vRO}")
e(f"v_add_u32 v1, {XR_L}, v1")
e("ds_read_u16 v2, v1")
def f_loads():
    e(f"global_load_dwordx4 {vr(24,4)}, v19, {sWS} sc1")
    e(f"global_load_dwordx4 {vr(28,4)}, v19, {sWS} offset:1024 sc1")
c("look only once this wave's own partial has been acknowledged: earlier looks just slow the writers down")
e("s_waitcnt vmcnt(0) lgkmcnt(0)")
e("v_lshlrev_b32 v2, 16, v2")
if FDLY: e(f"s_sleep {FDLY}")
if FPIPE <= 1:
    poll("L_f", f_loads, list(range(24, 32)), 36, SLP_F, issued=False)
else:
    c("several rounds in flight, so that a slow round never delays the next look")
    def fset(k): return 40 + 8*k
    def f_issue(k):
        e(f"global_load_dwordx4 {vr(fset(k),4)}, v19, {sWS} sc1")
        e(f"global_load_dwordx4 {vr(fset(k)+4,4)}, v19, {sWS} offset:1024 sc1")
    for k in range(FPIPE - 1):
        f_issue(k)
        e(f"s_sleep {SLP_F + 1}")
    lab("L_f_loop")
    for k in range(FPIPE):
        f_issue((k + FPIPE - 1) % FPIPE)
        e(f"s_waitcnt vmcnt({2*(FPIPE-1)})")
        for n in range(8): e(f"v_xor_b32 v{24+n}, {sTAG}, v{fset(k)+n}")
        e("v_or3_b32 v36, v24, v25, v26")
        e("v_or3_b32 v37, v27, v28, v29")
        e("v_or3_b32 v36, v36, v30, v31")
        e("v_or_b32 v36, v36, v37")
        e("v_and_b32 v36, 0xff, v36")
        e("v_cmp_ne_u32 vcc, 0, v36")
        e("s_cbranch_vccz L_f_done")
        if SLP_F: e(f"s_sleep {SLP_F}")
    e(f"s_add_u32 {sSPIN}, {sSPIN}, 1")
    e(f"s_cmp_le_u32 {sSPIN}, {SPIN_MAX}")
    e("s_cbranch_scc1 L_f_loop")
    lab("L_f_done")
ts(21)
for k in range(4): e(f"v_add_f32 v{24+k}, v{24+k}, v{28+k}")
fold4(24)
e("s_nop 1")
e("v_add_f32_dpp v24, v24, v24 row_ror:4 row_mask:0xf bank_mask:0xf")
e("s_nop 1")
e("v_add_f32_dpp v24, v24, v24 row_ror:8 row_mask:0xf bank_mask:0xf")
e("v_add_f32 v24, v24, v2")
e("v_cvt_pk_bf16_f32 v24, v24, v24")
e("s_mov_b32 exec_lo, 0x000f000f")
e("s_mov_b32 exec_hi, 0x000f000f")
e(f"global_store_short v{vRO}, v24, {sOUT}")
e("s_cmp_lg_u32 s2, 0")
e("s_cbranch_scc1 L_fin0")
c("workgroup 0 has (transitively) heard from every workgroup: advance the epoch")
e("s_mov_b64 exec, 1")
e(f"v_mov_b32 v1, {EP_G}")
e(f"v_mov_b32 v2, {sEP}")
e(f"global_store_dword v1, v2, {sWS}")
lab("L_fin0")
e("s_mov_b64 exec, -1")
ts(22)
dbg_out()
lab("L_fin")
ts_flush()
lab("L_end")
e("s_endpgm")
L.append(f""".section .rodata,"a"
.p2align 6
.amdhsa_kernel {NAME}_kernel
  .amdhsa_next_free_vgpr 144
  .amdhsa_next_free_sgpr 96
  .amdhsa_accum_offset 144
  .amdhsa_group_segment_fixed_size 0
  .amdhsa_kernarg_size 88
  .amdhsa_user_sgpr_count 2
  .amdhsa_user_sgpr_kernarg_segment_ptr 1
  .amdhsa_system_sgpr_workgroup_id_x 1
  .amdhsa_float_denorm_mode_32 3
.end_amdhsa_kernel""")
open(OUT, "w").write("\n".join(L) + "\n")
```

```python
import sys
NAME = "parallel_sum__sliding_block_cached__dense_activation_silu__decode"
opts = dict(a.split("=") for a in sys.argv[2:])
OUT = sys.argv[1] if len(sys.argv) > 1 else f"cdna_kernels/{NAME}.s"
def opt(k, d): return int(opts.get(k, d))
PROFILE = opt("prof", 0)
NLD = opt("nld", 1)
NS = [int(x) for x in opts.get("ns", "24,24,24,24,24").split(",")]
NS2 = [int(x) for x in opts["ns2"].split(",")] if "ns2" in opts else None
ASYM = int(opts.get("asym", "0xf0"), 0)
QTRY, QGAP = opt("qtry", 3), opt("qgap", 12)
ROT, WROT = opt("rot", 1), opt("wrot", 1)
ABL = opt("abl", 0)
NODUP = opt("nodup", 0)
EK = opt("ek", 0)
GP = opt("gp", 12)
SLP_Q, SLP_O, SLP_F = opt("slq", 4), opt("slo", 1), opt("slf", 4)
PRE_O, PRE_F, PRE_AT = opt("preo", 0), opt("pref", 0), opt("preat", 0)
FPIPE = opt("fpipe", 1)
RQ = opt("rq", 3)
TLBW = opt("tlbw", 0)
FDLY = opt("fdly", 0)
assert NLD == 1
NWAVES = 9 + NLD

L = []
def e(s): L.append("    " + s)
def lab(s): L.append(s + ":")
def c(s): L.append("    ; " + s)
def vr(a, n): return f"v[{a}:{a+n-1}]"

K_L, V_L, W_L = 0, 65536, 131072
WA_O, WB_O = 0, 16384
M_L = 155648
QL_L, QL_S = M_L, 288
PL_L, PL_S = QL_L + 4*288, 544
HL_L, HL_S = PL_L + 4*544, 160
MX_L = HL_L + 8*160
FL_L = MX_L + 128
XN_L, XN_S = FL_L + 64, 416
XR_L = XN_L + 8*XN_S
OL_L, OL_S = K_L, 288
LDS_BYTES = 163840
assert XR_L + 32 <= LDS_BYTES
F_GO, F_S0, F_WF, F_S1, F_S2, F_S3, F_KL, F_V5, F_V6 = 0, 4, 8, 12, 16, 20, 24, 28, 32
EP_G = 0
SG_G = 0x8000
QG_G = 0x10000
HG_G = QG_G + 0x80000
OG_G = HG_G + 0x70000
FG_G = OG_G + 0x80000
TS_G = 0x400000
assert FG_G + 0x80000 <= 0x200000
sX, sK, sV, sWQ, sWO, sW1, sW2, sOUT, sDBG, sWS = "s[4:5]", "s[6:7]", "s[8:9]", "s[10:11]", "s[12:13]", "s[16:17]", "s[18:19]", "s[20:21]", "s[22:23]", "s[24:25]"
sKVH, sR, sHI, sLO, sW, sEP, sTAG, sHG, sRB, sT0, sMSK, sSPIN = "s26", "s27", "s28", "s29", "s30", "s31", "s32", "s33", "s34", "s35", "s36", "s37"
sT1, sT2, sT3, sT4, sT5, sCT = "s42", "s43", "s44", "s45", "s46", "s47"
sFAST, sXC, sDO = "s54", "s55", "s3"
sDONE = "s55"
sXT = ["s60", "s61", "s62", "s63"]
AN = 64
SPIN_MAX = 1 << 18
LOG2E = "0x3fb8aa3b"
vTS = 120
def ts(k):
    if PROFILE:
        e("s_memrealtime s[40:41]")
        e("s_waitcnt lgkmcnt(0)")
        e(f"v_writelane_b32 v{vTS}, s40, {k}")
DBG = opt("dbg", 0)
def dbg_loader():
    if DBG:
        e(f"v_lshl_add_u32 v1, v0, 2, v{vFL}")
        e(f"ds_write_b32 v1, v{vTS} offset:64")
        e("s_waitcnt lgkmcnt(0)")
def dbg_out():
    if DBG:
        e(f"v_lshl_add_u32 v1, v0, 2, v{vFL}")
        e("ds_read_b32 v2, v1 offset:64")
        e("s_waitcnt lgkmcnt(0)")
        e("v_mov_b32 v3, 0")
        e("s_not_b32 s49, s48")
        e("v_writelane_b32 v3, s49, 0")
        e("v_writelane_b32 v3, s48, 1")
        for slot, k in enumerate((2, 5, 6, 8, 12, 14, 17, 19, 22)):
            e(f"v_readlane_b32 s49, v{vTS}, {k}")
            e("s_nop 3")
            e(f"v_writelane_b32 v3, s49, {2+slot}")
        for slot, k in enumerate((7, 1, 2, 3, 5)):
            e(f"v_readlane_b32 s49, v2, {k}")
            e("s_nop 3")
            e(f"v_writelane_b32 v3, s49, {11+slot}")
        e("v_lshlrev_b32 v1, 2, v0")
        e("s_mov_b64 exec, 0xffff")
        e(f"global_atomic_umax v1, v3, {sDBG}")
def ts_flush():
    if PROFILE and not DBG:
        e(f"v_writelane_b32 v{vTS}, s48, 0")
        e("s_mov_b64 exec, 0xffffff")
        e(f"s_mul_i32 {sT0}, s2, {NWAVES}")
        e(f"s_add_u32 {sT0}, {sT0}, {sW}")
        e(f"s_lshl_b32 {sT0}, {sT0}, 7")
        e(f"s_add_u32 {sT0}, {sT0}, {TS_G}")
        e(f"v_lshl_add_u32 v{vTS+1}, v0, 2, {sT0}")
        e(f"global_store_dword v{vTS+1}, v{vTS}, {sWS}")

vTAG, vWT, vFL, vONE, vG = 6, 7, 8, 9, 3
vRO, vFP = 117, 118

def tag4(r):
    for k in range(4):
        e(f"v_and_or_b32 v{r+k}, v{r+k}, {sMSK}, v{vTAG}")
def pub(name, addr, r, allow_plain):
    if allow_plain:
        e(f"s_cmp_lg_u32 {sFAST}, 0")
        e(f"s_cbranch_scc1 {name}_wt")
        e(f"global_store_dwordx4 v{addr}, {vr(r,4)}, {sWS}")
        e(f"s_branch {name}_ok")
        lab(f"{name}_wt")
    e(f"global_store_dwordx4 v{addr}, {vr(r,4)}, {sWS} sc1")
    lab(f"{name}_ok")
def an_load(): e(f"s_load_dwordx8 s[{AN}:{AN+7}], {sDBG}, {sDO} glc")
def an_diff(dst, want, mask):
    for k in range(8): e(f"s_xor_b32 s{AN+k}, s{AN+k}, {want}")
    e(f"s_or_b64 s[{AN}:{AN+1}], s[{AN}:{AN+1}], s[{AN+2}:{AN+3}]")
    e(f"s_or_b64 s[{AN+4}:{AN+5}], s[{AN+4}:{AN+5}], s[{AN+6}:{AN+7}]")
    e(f"s_or_b64 s[{AN}:{AN+1}], s[{AN}:{AN+1}], s[{AN+4}:{AN+5}]")
    e(f"s_or_b32 {dst}, s{AN}, s{AN+1}")
    e(f"s_and_b32 {dst}, {dst}, {mask}")
def republish(name):
    e(f"s_cmp_lg_u32 {sDONE}, 0")
    e(f"s_cbranch_scc1 {name}")
    e(f"s_mov_b32 {sDONE}, 1")
    e("s_mov_b64 s[58:59], exec")
    e("s_mov_b32 exec_lo, 0x00ff00ff")
    e("s_mov_b32 exec_hi, 0x00ff00ff")
    e(f"global_store_dwordx4 v116, {vr(112,4)}, {sWS} sc1")
    e("s_mov_b64 exec, s[58:59]")
    lab(name)
def arrive(f):
    e("s_mov_b64 exec, 1")
    e(f"ds_add_u32 v{vFL}, v{vONE} offset:{f}")
    e("s_mov_b64 exec, -1")
def wait_flag(name, f, thr, sleep=0):
    if sleep:
        e(f"s_branch {name}")
        lab(name + "_z")
        e(f"s_sleep {sleep}")
    lab(name)
    e(f"ds_read_b32 v1, v{vFL} offset:{f}")
    e("s_waitcnt lgkmcnt(0)")
    e(f"v_readfirstlane_b32 {sT0}, v1")
    e(f"s_cmp_lt_u32 {sT0}, {thr}")
    e(f"s_cbranch_scc1 {name}" + ("_z" if sleep else ""))
def poll(name, loads, regs, tmp, sleep, issued=True, tags=None, onfail=None, dup=None, first=0):
    if issued:
        e(f"s_waitcnt vmcnt({first})")
        e(f"s_branch {name}_chk")
    lab(f"{name}_poll")
    loads()
    e("s_waitcnt vmcnt(0)")
    lab(f"{name}_chk")
    for n, r in enumerate(regs): e(f"v_xor_b32 v{r}, {tags[n] if tags else sTAG}, v{r}")
    e(f"v_or3_b32 v{tmp}, v{regs[0]}, v{regs[1]}, v{regs[2]}")
    rest = regs[3:]
    while len(rest) >= 2:
        e(f"v_or3_b32 v{tmp}, v{tmp}, v{rest[0]}, v{rest[1]}"); rest = rest[2:]
    if rest: e(f"v_or_b32 v{tmp}, v{tmp}, v{rest[0]}")
    e(f"v_and_b32 v{tmp}, 0xff, v{tmp}")
    if dup:
        for (a, b) in dup: e(f"v_xor_b32 v{b}, v{a}, v{b}")
        e(f"v_or3_b32 v{tmp}, v{tmp}, v{dup[0][1]}, v{dup[1][1]}")
    e(f"s_add_u32 {sSPIN}, {sSPIN}, 1")
    e(f"s_cmp_gt_u32 {sSPIN}, {SPIN_MAX}")
    e(f"v_or_b32_dpp v{tmp}, v{tmp}, v{tmp} quad_perm:[1,0,3,2] row_mask:0xf bank_mask:0xf")
    e(f"s_cbranch_scc1 {name}_done")
    e("s_nop 0")
    e(f"v_or_b32_dpp v{tmp}, v{tmp}, v{tmp} quad_perm:[2,3,0,1] row_mask:0xf bank_mask:0xf")
    e(f"v_cmp_ne_u32 vcc, 0, v{tmp}")
    e(f"s_cbranch_vccz {name}_done")
    e("s_mov_b64 exec, vcc")
    if onfail: onfail()
    if sleep: e(f"s_sleep {sleep}")
    e(f"s_branch {name}_poll")
    lab(f"{name}_done")
    e("s_mov_b64 exec, -1")
def round2(a, b, t):
    e(f"v_cvt_pk_bf16_f32 v{t}, v{a}, v{b}")
    e(f"v_lshlrev_b32 v{a}, 16, v{t}")
    e(f"v_and_b32 v{b}, 0xffff0000, v{t}")
def round1(a):
    e(f"v_cvt_pk_bf16_f32 v{a}, v{a}, v{a}")
    e(f"v_lshlrev_b32 v{a}, 16, v{a}")
def fold4(r):
    e("s_nop 1")
    e(f"v_permlane32_swap_b32 v{r}, v{r+2}")
    e(f"v_permlane32_swap_b32 v{r+1}, v{r+3}")
    e(f"v_add_f32 v{r}, v{r}, v{r+2}")
    e(f"v_add_f32 v{r+1}, v{r+1}, v{r+3}")
    e("s_nop 1")
    e(f"v_permlane16_swap_b32 v{r}, v{r+1}")
    e(f"v_add_f32 v{r}, v{r}, v{r+1}")

hdr = open(f"cdna_kernels/{NAME}.s.ref").read().split("; Override launch geometry")[0]
L.append(hdr.rstrip("\n"))
L.append(f"; @launch grid=(256,1,1) block=({NWAVES*64},1,1) lds={LDS_BYTES}")
L.append('.amdgcn_target "amdgcn-amd-amdhsa--gfx950"')
L.append(".text")
L.append(f".globl {NAME}_kernel")
L.append(".p2align 8")
L.append(f".type {NAME}_kernel,@function")
lab(f"{NAME}_kernel")
AMP = opt("amp", 0)
if PROFILE or AMP: e("s_memrealtime s[48:49]")
e("s_cmp_ge_u32 s2, 256")
e("s_cbranch_scc1 L_end")
e("s_load_dwordx16 s[4:19], s[0:1], 0")
e("s_load_dwordx4 s[20:23], s[0:1], 64")
e("s_load_dwordx2 s[24:25], s[0:1], 80")
e("s_getpc_b64 s[38:39]")
e("v_lshrrev_b32 v1, 6, v0")
e("v_and_b32 v0, 63, v0")
e(f"s_and_b32 {sKVH}, s2, 7")
e(f"v_readfirstlane_b32 {sW}, v1")
e(f"s_lshr_b32 {sR}, s2, 3")
e(f"s_lshr_b32 {sHI}, s2, 5")
e(f"s_and_b32 {sLO}, {sR}, 3")
e(f"s_lshl_b32 {sHG}, {sKVH}, 2")
e(f"s_add_u32 {sHG}, {sHG}, {sLO}")
e(f"s_min_u32 {sRB}, {sHG}, 27")
if PROFILE: e(f"v_mov_b32 v{vTS}, 0")
e(f"v_lshrrev_b32 v{vG}, 4, v0")
e(f"v_mov_b32 v{vFL}, {FL_L}")
e(f"v_mov_b32 v{vONE}, 1")
c("waves: loaders first, then the helper, then eight compute waves")
e(f"s_add_u32 {sW}, {sW}, 8")
e(f"s_cmp_lt_u32 {sW}, {8+NLD}")
e("s_cbranch_scc1 L_ld")
e(f"s_cmp_eq_u32 {sW}, {8+NLD}")
e("s_cbranch_scc1 L_hp")
e(f"s_sub_u32 {sW}, {sW}, {9+NLD}")
e(f"s_lshl_b32 {sT0}, {sW}, 10")
e(f"v_lshl_add_u32 v10, v0, 4, {sT0}")
e("s_waitcnt lgkmcnt(0)")
if ABL != 1: e(f"global_load_dwordx4 v[16:19], v10, {sX} nt")
if ABL not in (1, 2): e(f"s_load_dword {sEP}, {sWS}, {EP_G}")
e("s_branch L_c")

lab("L_ld")
PER = 4 // NLD
sLD = sT5
e("s_setprio 3")
e(f"s_sub_u32 {sLD}, {sW}, 8")
c("weight tiles: row = l>>3, source byte = ((l&7) ^ ((l>>3)&2)) * 16, odd instructions flip byte bit 6")
e("v_lshrrev_b32 v4, 3, v0")
e("v_and_b32 v5, 7, v0")
e("v_and_b32 v1, 2, v4")
e("v_xor_b32 v5, v5, v1")
e("v_lshlrev_b32 v5, 4, v5")
if NLD == 2:
    e(f"s_lshl_b32 {sT0}, {sLD}, 3")
    e(f"v_add_u32 v4, {sT0}, v4")
    e(f"s_lshl_b32 {sT0}, {sLD}, 6")
    e(f"v_xor_b32 v5, {sT0}, v5")
def odd(r, step):
    if NLD == 1:
        e(f"v_add_u32 v{r+1}, {step}, v{r}")
        e(f"v_xor_b32 v{r+1}, 64, v{r+1}")
e(f"s_lshl_b32 {sT0}, {sLO}, 20")
e(f"s_lshl_b32 {sT1}, {sKVH}, 10")
e(f"s_add_u32 {sT0}, {sT0}, {sT1}")
e(f"s_lshl_b32 {sT3}, {sHI}, 7")
e(f"s_add_u32 {sT0}, {sT0}, {sT3}")
e("v_lshl_add_u32 v10, v4, 13, v5")
e(f"v_add_u32 v10, {sT0}, v10")
odd(10, "0x10000")
e(f"s_mul_i32 {sT0}, {sHI}, {64*3584}")
e(f"s_lshl_b32 {sT1}, {sRB}, 7")
e(f"s_add_u32 {sT0}, {sT0}, {sT1}")
e("v_mul_u32_u24 v12, 3584, v4")
e(f"v_add3_u32 v12, v12, v5, {sT0}")
odd(12, 8*3584)
c("K / V source offsets (swizzled inside each 256-byte row)")
e(f"s_lshl_b32 {sT1}, {sHI}, 3")
e(f"s_add_u32 {sT1}, {sT1}, {sKVH}")
e(f"s_lshl_b32 {sT1}, {sT1}, 20")
e(f"s_lshl_b32 {sT2}, {sLO}, 16")
e(f"s_add_u32 {sT1}, {sT1}, {sT2}")
e(f"s_add_u32 {sT1}, {sT1}, {768*1024}")
e("v_and_b32 v1, 15, v0")
e(f"v_lshl_add_u32 v2, v{vG}, 8, {sT1}")
e(f"v_xor_b32 v20, v1, v{vG}")
e("v_lshl_add_u32 v20, v20, 4, v2")
e(f"v_lshlrev_b32 v14, 1, v{vG}")
e("v_xor_b32 v14, v1, v14")
e("v_lshl_add_u32 v14, v14, 4, v2")
e("v_xor_b32 v21, 64, v20")
e("v_xor_b32 v22, 128, v20")
e("v_xor_b32 v23, 192, v20")
e("v_xor_b32 v15, 128, v14")
c("workgroups of one XCD start on different HBM stacks (4 KB interleave): rotate the key groups")
sROT = "s52"
e(f"s_lshl_b32 {sROT}, {sHI}, 12")
e("s_waitcnt lgkmcnt(0)")
ts(7)
c("early weights, interleaved with the first K groups (one XCD's wq columns live on few channels)")
seq = []
nk = 0
for i in range(16):
    seq.append(("q", i))
    if i & 1: seq.append(("1", i // 2))
    for _ in range(EK if i < 15 else 0):
        seq.append(("k", nk)); nk += 1
E_LAST = len(seq) - 1
while nk % 4: seq.append(("k", nk)); nk += 1
G0 = nk // 4
for idx, (kind, n) in enumerate(seq):
    if idx == NS[0]: e("s_barrier")
    if kind == "k" and n % 4 == 0:
        e(f"s_add_u32 s50, s6, {sROT}")
        e("s_addc_u32 s51, s7, 0")
        e(f"s_add_u32 {sROT}, {sROT}, 4096")
        e(f"s_and_b32 {sROT}, {sROT}, 0xffff")
    m0v = {"q": W_L + WA_O + n*1024, "1": W_L + WB_O + n*1024, "k": (n // 4) * 4096}[kind]
    e(f"s_mov_b32 m0, {m0v}")
    e(f"s_waitcnt vmcnt({NS[0]-1})" if idx >= NS[0] else "s_nop 0")
    if kind == "k":
        e(f"global_load_lds_dwordx4 v{20 + n % 4}, s[50:51] offset:{(n % 4)*1024} nt")
    else:
        r = (10 if kind == "q" else 12) + (n & 1)
        e(f"global_load_lds_dwordx4 v{r}, {sWQ if kind == 'q' else sW1} nt")
        e(f"v_add_u32 v{r}, {'0x20000' if kind == 'q' else 16*3584}, v{r}")
if len(seq) <= NS[0]: e("s_barrier")
E_AFTER = len(seq) - 1 - E_LAST
e(f"s_mov_b32 m0, {G0*4096}")
ts(1)
def stream_loop(name, base, regs, ngroups, n):
    lo, hi = base[2:-1].split(":")
    if ngroups > 1:
        e(f"s_mov_b32 {sT0}, {ngroups}")
        lab(name)
    e(f"s_add_u32 s50, s{lo}, {sROT}")
    e(f"s_addc_u32 s51, s{hi}, 0")
    for k in range(PER):
        e(f"s_waitcnt vmcnt({n-1})")
        e(f"global_load_lds_dwordx4 v{regs[k]}, s[50:51] offset:{k*1024} nt")
    e(f"s_add_u32 {sROT}, {sROT}, 4096")
    e(f"s_and_b32 {sROT}, {sROT}, 0xffff")
    e("s_add_u32 m0, m0, 4096")
    if ngroups > 1:
        e(f"s_sub_u32 {sT0}, {sT0}, 1")
        e(f"s_cmp_lg_u32 {sT0}, 0")
        e(f"s_cbranch_scc1 {name}")
def loader_stream(var, NS):
    NG = [NS[g // 8] // NLD for g in range(32)]
    NLW = NS[4] // NLD
    sig = {}
    sig.setdefault(GP-1, []).append(F_GO)
    pend = [(G0 - E_AFTER/4, F_S0), (16, F_KL), (28, F_V5), (30, F_V6)]
    for g in range(G0, 32):
        while pend and PER*g + PER - NG[g] >= PER*pend[0][0]:
            sig.setdefault(g, []).append(pend.pop(0)[1])
    g = G0
    assert GP > G0
    while g < 32:
        h = g
        while h + 1 < 32 and h not in sig and NG[h+1] == NG[g] and (h+1) != 16: h += 1
        stream_loop(f"L_g{var}_{g}", sK if g < 16 else sV, [20,21,22,23] if g < 16 else [14,14,15,15], h - g + 1, NG[g])
        for f in sig.get(h, []):
            arrive(f)
            if f == F_S0: ts(6)
        if h == 15: ts(2)
        g = h + 1
    ts(3)
    c("late weights into the (now free) weight area; 8-row blocks in rotated order")
    e("v_lshl_add_u32 v1, v4, 10, v5")
    e(f"s_lshl_b32 {sT1}, {sHG}, 17")
    e(f"s_add_u32 {sT1}, {sT1}, {sT3}")
    e(f"v_add_u32 v10, {sT1}, v1")
    e(f"s_lshl_b32 {sT1}, {sRB}, 16")
    e(f"s_add_u32 {sT1}, {sT1}, {sT3}")
    e(f"v_add_u32 v12, {sT1}, v1")
    if WROT: e(f"s_and_b32 {sROT}, {sHI}, 3")
    else: e(f"s_mov_b32 {sROT}, 0")
    e(f"s_and_b32 {sT1}, {sROT}, 1")
    e(f"s_lshl_b32 {sT1}, {sT1}, 6")
    e(f"v_xor_b32 v10, {sT1}, v10")
    e(f"v_xor_b32 v12, {sT1}, v12")
    e("v_xor_b32 v11, 64, v10")
    e("v_xor_b32 v13, 64, v12")
    e(f"s_lshl_b32 {sROT}, {sROT}, 13")
    if ABL not in (1, 2): wait_flag(f"L_wfree{var}", F_WF, 8)
    pend.append((32, None))
    NLATE = 24 // NLD
    for i in range(NLATE):
        e(f"s_waitcnt vmcnt({NLW-1})")
        bar = False
        while pend and 32*PER + i + 1 - NLW >= PER*pend[0][0]:
            f = pend.pop(0)[1]
            if f is None: bar = True
            else: arrive(f)
        lo_, hi_ = (sWO if i < 16 else sW2)[2:-1].split(":")
        e(f"s_and_b32 {sT1}, {sROT}, {0x1ffff if i < 16 else 0xffff:#x}")
        e(f"s_add_u32 s50, s{lo_}, {sT1}")
        e(f"s_addc_u32 s51, s{hi_}, 0")
        e(f"s_lshr_b32 {sT1}, {sT1}, 3")
        e(f"s_add_u32 m0, {sT1}, {W_L + (WA_O if i < 16 else WB_O)}")
        e(f"s_add_u32 {sROT}, {sROT}, 0x2000")
        e(f"global_load_lds_dwordx4 v{(10 if i < 16 else 12) + (i & 1)}, s[50:51] nt")
        if bar: e("s_barrier")
    ts(4)
    for (grp, f) in pend:
        e(f"s_waitcnt vmcnt({32*PER + NLATE - PER*grp})")
        if f is None: e("s_barrier")
        else: arrive(f)
    e("s_waitcnt vmcnt(0)")
    ts(5)
    dbg_loader()
    e("s_barrier")
    e("s_branch L_fin")

if NS2:
    e(f"s_lshr_b32 {sT0}, {ASYM:#x}, {sKVH}")
    e(f"s_and_b32 {sT0}, {sT0}, 1")
    e("s_cbranch_scc1 L_var1")
loader_stream(0, NS)
if NS2:
    lab("L_var1")
    loader_stream(1, NS2)

lab("L_hp")
e(f"v_lshl_add_u32 v1, v0, 2, v{vFL}")
e("v_mov_b32 v2, 0")
e("s_mov_b64 exec, 0xffff")
e("ds_write_b32 v1, v2")
e("s_mov_b64 exec, -1")
if TLBW:
    e(f"s_lshl_b32 {sT1}, {sHI}, 3")
    e(f"s_add_u32 {sT1}, {sT1}, {sKVH}")
    e(f"s_lshl_b32 {sT1}, {sT1}, 20")
    e(f"s_lshl_b32 {sT2}, {sLO}, 16")
    e(f"s_add_u32 {sT1}, {sT1}, {sT2}")
    e(f"s_lshl_b32 {sT2}, {sHG}, 17")
    e(f"s_lshl_b32 {sT3}, {sRB}, 16")
e("s_waitcnt lgkmcnt(0)")
if TLBW:
    c("first touch of every page this workgroup streams from later, while memory is still quiet")
    e(f"s_load_dword s76, {sK}, {sT1} offset:{768*1024}")
    e(f"s_load_dword s77, {sV}, {sT1} offset:{768*1024}")
    e(f"s_load_dword s78, {sWO}, {sT2}")
    e(f"s_load_dword s79, {sW2}, {sT3}")
e("s_barrier")
if ABL in (1, 2): e("s_branch L_fin")
c("warm L2: two lines of this kernel's code, the output page, this workgroup's stats line")
e(f"s_lshl_b32 {sT0}, {sR}, 8")
e(f"s_load_dword s72, s[38:39], {sT0}")
e(f"s_load_dword s73, s[38:39], {sT0} offset:128")
e(f"s_load_dword s74, {sOUT}, 0")
if PRE_O or PRE_F:
    c("lanes 0-15: the o lines this workgroup publishes into; lanes 16-31: the lines its final reduction polls")
    e(f"s_lshl_b32 {sT0}, {sKVH}, 16")
    e(f"s_lshl_b32 {sT1}, {sR}, 9")
    e(f"s_add_u32 {sT1}, {sT1}, {sT0}")
    e(f"s_add_u32 {sT1}, {sT1}, {OG_G}")
    e("v_bfe_u32 v1, v0, 2, 2")
    e("v_and_b32 v2, 3, v0")
    e("v_lshlrev_b32 v2, 7, v2")
    e("v_lshl_add_u32 v1, v1, 14, v2")
    e(f"v_add_u32 v10, {sT1}, v1")
    e(f"s_lshl_b32 {sT0}, {sHG}, 14")
    e(f"s_lshl_b32 {sT1}, {sHI}, 11")
    e(f"s_add_u32 {sT0}, {sT0}, {sT1}")
    e(f"s_add_u32 {sT0}, {sT0}, {FG_G - 2048}")
    e("s_mov_b64 exec, 0xffff0000")
    e(f"v_lshl_add_u32 v10, v0, 7, {sT0}")
    e("s_mov_b64 exec, -1")
    wait_flag("L_hwf", [F_GO, F_KL, F_V5][PRE_AT], NLD, sleep=8)
    e(f"s_mov_b32 exec_lo, {(0xffff if PRE_O else 0) | (0xffff0000 if PRE_F else 0):#x}")
    e("s_mov_b32 exec_hi, 0")
    e(f"global_load_dword v11, v10, {sWS} sc1 nt")
    e("s_waitcnt vmcnt(0)")
    e("s_mov_b64 exec, -1")
e("s_waitcnt lgkmcnt(0)")
ts(3)
e("s_branch L_fin")

lab("L_c")
e(f"s_and_b32 {sCT}, {sW}, 3")
c("reducer output offset: b*512 + hg*16 + (l&3)*4 + (l>>4)")
e("v_and_b32 v1, 3, v0")
e(f"v_lshl_add_u32 v1, v1, 2, v{vG}")
e(f"s_lshl_b32 {sT0}, {sHI}, 9")
e(f"s_lshl_b32 {sT1}, {sHG}, 4")
e(f"s_add_u32 {sT0}, {sT0}, {sT1}")
e(f"v_add_lshl_u32 v{vRO}, v1, {sT0}, 1")
c("weight transpose-read address")
e("v_bfe_u32 v2, v0, 2, 2")
e(f"v_lshl_add_u32 v1, v{vG}, 3, v2")
e("v_bfe_u32 v2, v0, 3, 2")
e(f"v_xor_b32 v2, {sCT}, v2")
e("v_lshlrev_b32 v2, 5, v2")
e("v_lshl_add_u32 v1, v1, 7, v2")
e("v_and_b32 v2, 3, v0")
e("v_lshl_add_u32 v1, v2, 3, v1")
e(f"v_add_u32 v{vWT}, {W_L}, v1")
c("xn write addresses / masks, xn fragment address, publish address")
e(f"s_mul_i32 {sT0}, {sW}, {XN_S}")
e(f"s_add_u32 {sT0}, {sT0}, {XN_L}")
e("v_and_b32 v2, 15, v0")
e(f"v_lshl_add_u32 v10, v2, 4, {sT0}")
e("v_and_b32 v1, 7, v0")
e(f"v_lshl_add_u32 v11, v1, 4, {sT0}")
e(f"s_lshl_b32 {sT0}, {sLO}, 4")
e(f"s_lshl_b64 s[50:51], 0xffff, {sT0}")
e(f"s_lshl_b32 {sT0}, {sHI}, 3")
e(f"s_lshl_b64 s[52:53], 0xff, {sT0}")
e(f"s_lshl_b32 {sT0}, {sHG}, 1")
e(f"s_lshl_b64 s[56:57], 3, {sT0}")
e(f"v_mul_u32_u24 v12, {XN_S}, v1")
e(f"v_lshl_add_u32 v12, v{vG}, 4, v12")
e(f"v_add_u32 v12, {XN_L}, v12")
e("v_and_b32 v14, 1, v0")
e("v_lshlrev_b32 v14, 4, v14")
e(f"v_add_u32 v14, {XR_L}, v14")
e(f"s_lshl_b32 {sT2}, {sCT}, 6")
e(f"v_lshl_add_u32 v1, v{vG}, 4, {sT2}")
e(f"s_lshl_b32 {sT0}, {sKVH}, 16")
e(f"s_lshl_b32 {sT1}, {sLO}, 11")
e(f"s_add_u32 {sT0}, {sT0}, {sT1}")
e(f"s_lshl_b32 {sT1}, {sHI}, 8")
e(f"s_add_u32 {sT0}, {sT0}, {sT1}")
e(f"s_add_u32 {sT0}, {sT0}, {QG_G}")
e(f"s_lshl_b32 {sT2}, {sRB}, 14")
e(f"s_lshl_b32 {sT1}, {sHI}, 11")
e(f"s_add_u32 {sT2}, {sT2}, {sT1}")
e(f"s_add_u32 {sT2}, {sT2}, {HG_G}")
e(f"s_cmp_lt_u32 {sW}, 4")
e(f"s_cselect_b32 {sT0}, {sT0}, {sT2}")
e(f"s_cselect_b32 {sT1}, 13, 8")
e(f"v_lshlrev_b32 v116, {sT1}, v2")
e(f"v_add3_u32 v116, v116, v1, {sT0}")
e(f"s_mov_b32 {sDONE}, 0")
e("s_barrier")
ts(1)
A, ra = 20, 28
e("s_waitcnt vmcnt(0)")
ts(2)
if ABL in (1, 2): e("s_branch L_fin")
e(f"s_cmp_lg_u32 {sW}, {sHI}")
e("s_cbranch_scc1 L_noxr")
e("s_mov_b64 exec, s[56:57]")
e("ds_write_b128 v14, v[16:19]")
e("s_mov_b64 exec, -1")
lab("L_noxr")
for k in range(4):
    e(f"v_lshlrev_b32 v{A+2*k}, 16, v{16+k}")
    e(f"v_and_b32 v{A+2*k+1}, 0xffff0000, v{16+k}")
def wave_sum():
    for m in ("quad_perm:[1,0,3,2] row_mask:0xf bank_mask:0xf", "quad_perm:[2,3,0,1] row_mask:0xf bank_mask:0xf",
              "row_half_mirror row_mask:0xf bank_mask:0xf", "row_mirror row_mask:0xf bank_mask:0xf",
              "row_bcast:15 row_mask:0xa bank_mask:0xf", "row_bcast:31 row_mask:0xc bank_mask:0xf"):
        e("s_nop 1")
        e(f"v_add_f32_dpp v{ra}, v{ra}, v{ra} {m}")
    e(f"v_mul_f32 v{ra}, 0x3b000000, v{ra}")
e(f"v_add_f32 v{ra}, v{A}, v{A+1}")
e(f"v_add_f32 v29, v{A+2}, v{A+3}")
e(f"v_add_f32 v30, v{A+4}, v{A+5}")
e(f"v_add_f32 v31, v{A+6}, v{A+7}")
e(f"v_add_f32 v{ra}, v{ra}, v29")
e("v_add_f32 v30, v30, v31")
e(f"v_add_f32 v{ra}, v{ra}, v30")
wave_sum()
e(f"v_cvt_pk_bf16_f32 v29, v{ra}, v{ra}")
e(f"v_readlane_b32 {sT0}, v{ra}, 63")
e(f"v_readlane_b32 {sT2}, v29, 63")
e("s_nop 0")
for k in range(8): e(f"v_subrev_f32 v{32+k}, {sT0}, v{A+k}")
e(f"s_lshl_b32 {sT2}, {sT2}, 16")
e(f"v_mul_f32 v{ra}, v32, v32")
e("v_mul_f32 v29, v33, v33")
for k in range(2, 8, 2):
    e(f"v_fmac_f32 v{ra}, v{32+k}, v{32+k}")
    e(f"v_fmac_f32 v29, v{33+k}, v{33+k}")
e(f"v_add_f32 v{ra}, v{ra}, v29")
wave_sum()
round1(ra)
e(f"v_add_f32 v{ra}, 0x3727c5ac, v{ra}")
round1(ra)
e(f"v_sqrt_f32 v{ra}, v{ra}")
for k in range(8): e(f"v_subrev_f32 v{A+k}, {sT2}, v{A+k}")
round1(ra)
e(f"v_rcp_f32 v29, v{ra}")
for k in range(4): round2(A+2*k, A+2*k+1, 30 + (k & 1))
e(f"v_readlane_b32 {sT0}, v{ra}, 63")
e(f"v_readlane_b32 {sT4}, v29, 63")
e("s_nop 1")
for k in range(8): e(f"v_mul_f32 v{32+k}, {sT4}, v{A+k}")
for k in range(8): e(f"v_fma_f32 v{A+k}, -v{32+k}, {sT0}, v{A+k}")
for k in range(8): e(f"v_fma_f32 v{32+k}, v{A+k}, {sT4}, v{32+k}")
for k in range(4): e(f"v_cvt_pk_bf16_f32 v{16+k}, v{32+2*k}, v{33+2*k}")
e("s_mov_b64 exec, s[50:51]")
e("ds_write_b128 v10, v[16:19]")
e("s_mov_b64 exec, s[52:53]")
e("ds_write_b128 v11, v[16:19] offset:256")
arrive(F_S0)
e("s_waitcnt lgkmcnt(0)")
ts(3)
e(f"s_add_u32 {sEP}, {sEP}, 1")
e(f"s_and_b32 {sTAG}, {sEP}, 0xff")
e(f"s_cselect_b32 {sT0}, 0, 1")
e(f"s_add_u32 {sEP}, {sEP}, {sT0}")
e(f"s_add_u32 {sTAG}, {sTAG}, {sT0}")
e(f"s_mov_b32 {sMSK}, 0xffffff00")
e(f"v_mov_b32 v{vTAG}, {sTAG}")
c("q partials also carry the producer's XCC id, one bit per dword (bit 8)")
e(f"s_getreg_b32 {sT1}, hwreg(HW_REG_XCC_ID, 0, 4)")
for k, sx in enumerate(sXT):
    e(f"s_lshl_b32 {sx}, {sT1}, {8-k}")
    e(f"s_and_b32 {sx}, {sx}, 0x100")
    e(f"s_or_b32 {sx}, {sx}, {sTAG}")
e("v_mov_b32 v60, 0xfffffe00")
wait_flag("L_s0", F_S0, 8 + NLD, sleep=1)
ts(5)
e(f"s_cmp_ge_u32 {sW}, 4")
e("s_cbranch_scc1 L_hproj")
for s in range(4):
    e(f"ds_read_b64_tr_b16 {vr(24+4*s,2)}, v{vWT} offset:{WA_O + s*4096}")
    e(f"ds_read_b64_tr_b16 {vr(26+4*s,2)}, v{vWT} offset:{WA_O + s*4096 + 512}")
    e(f"ds_read_b128 {vr(40+4*s,4)}, v12 offset:{s*64}")
for s in range(4):
    e(f"s_waitcnt lgkmcnt({9-3*s})")
    e(f"v_mfma_f32_16x16x32_bf16 {vr(112,4)}, {vr(24+4*s,4)}, {vr(40+4*s,4)}, " + ("0" if s == 0 else vr(112,4)))
e("s_mov_b32 exec_lo, 0x00ff00ff")
e("s_mov_b32 exec_hi, 0x00ff00ff")
e("s_nop 5")
for k, sx in enumerate(sXT):
    e(f"v_and_or_b32 v{112+k}, v{112+k}, v60, {sx}")
e("s_branch L_pub")
lab("L_hproj")
for s in range(2):
    e(f"ds_read_b64_tr_b16 {vr(24+4*s,2)}, v{vWT} offset:{WB_O + s*4096}")
    e(f"ds_read_b64_tr_b16 {vr(26+4*s,2)}, v{vWT} offset:{WB_O + s*4096 + 512}")
    e(f"ds_read_b128 {vr(40+4*s,4)}, v12 offset:{256 + s*64}")
for s in range(2):
    e(f"s_waitcnt lgkmcnt({3-3*s})")
    e(f"v_mfma_f32_16x16x32_bf16 {vr(112,4)}, {vr(24+4*s,4)}, {vr(40+4*s,4)}, " + ("0" if s == 0 else vr(112,4)))
e(f"s_cmp_eq_u32 {sKVH}, 7")
e(f"s_cselect_b32 {sDONE}, 1, 0")
e("s_cbranch_scc1 L_pq_ok")
e("s_mov_b32 exec_lo, 0x00ff00ff")
e("s_mov_b32 exec_hi, 0x00ff00ff")
e("s_nop 5")
tag4(112)
lab("L_pub")
c("optimistic: visible through the shared L2; repeated write-through below unless the whole group shares this XCD")
e(f"global_store_dwordx4 v116, {vr(112,4)}, {sWS}")
lab("L_pq_ok")
arrive(F_WF)
ts(6)
if ABL == 3: e("s_branch L_fin")
e("v_and_b32 v2, 15, v0")
e(f"v_lshlrev_b32 v1, 11, v{vG}")
e("v_lshl_add_u32 v1, v2, 4, v1")
e(f"s_lshl_b32 {sT0}, {sKVH}, 16")
e(f"s_lshl_b32 {sT1}, {sHI}, 13")
e(f"s_add_u32 {sT0}, {sT0}, {sT1}")
e(f"s_lshl_b32 {sT1}, {sW}, 8")
e(f"s_add_u32 {sT0}, {sT0}, {sT1}")
e(f"s_add_u32 {sT0}, {sT0}, {QG_G}")
e(f"v_add_u32 v10, {sT0}, v1")
e(f"s_lshl_b32 {sT0}, {sRB}, 14")
e(f"s_add_u32 {sT0}, {sT0}, {sT1}")
e(f"s_add_u32 {sT0}, {sT0}, {HG_G}")
e(f"v_add_u32 v11, {sT0}, v1")
e("v_add_u32 v12, 0x2000, v11")
e(f"v_lshlrev_b32 v1, 1, v{vG}")
e("v_lshl_add_u32 v1, v2, 3, v1")
e(f"s_lshr_b32 {sT0}, {sW}, 1")
e(f"s_mul_i32 {sT0}, {sT0}, {QL_S}")
e(f"s_and_b32 {sT1}, {sW}, 1")
e(f"s_lshl_b32 {sT1}, {sT1}, 7")
e(f"s_add_u32 {sT0}, {sT0}, {sT1}")
e(f"s_add_u32 {sT0}, {sT0}, {QL_L}")
e(f"v_add_u32 v13, {sT0}, v1")
e(f"s_mul_i32 {sT0}, {sW}, {HL_S}")
e(f"s_add_u32 {sT0}, {sT0}, {HL_L}")
e(f"v_add_u32 v16, {sT0}, v1")
e(f"v_xor_b32 v1, v{vG}, v2")
e("v_lshlrev_b32 v1, 4, v1")
e("v_lshl_add_u32 v1, v2, 8, v1")
e(f"s_lshl_b32 {sT0}, {sW}, 13")
e(f"v_add_u32 v20, {sT0}, v1")
e("v_xor_b32 v21, 64, v20")
e("v_xor_b32 v22, 128, v20")
e("v_xor_b32 v23, 192, v20")
e("v_and_b32 v1, 3, v0")
e(f"v_mul_u32_u24 v17, {QL_S}, v1")
e(f"v_lshl_add_u32 v17, v{vG}, 4, v17")
e(f"v_add_u32 v17, {QL_L}, v17")
e("v_lshlrev_b32 v18, 5, v1")
e(f"v_add_u32 v18, {MX_L}, v18")
e(f"s_lshl_b32 {sT0}, {sW}, 2")
e(f"v_add_u32 v19, {sT0}, v18")
e(f"v_mul_u32_u24 v2, {PL_S}, v1")
e(f"v_lshl_add_u32 v{vFP}, v{vG}, 4, v2")
e(f"v_add_u32 v{vFP}, {PL_L}, v{vFP}")
e("v_lshrrev_b32 v1, 2, v0")
e("v_lshl_add_u32 v2, v1, 1, v2")
e(f"s_lshl_b32 {sT0}, {sW}, 6")
e(f"s_add_u32 {sT0}, {sT0}, {PL_L}")
e(f"v_add_u32 v119, {sT0}, v2")
e(f"s_mov_b32 {sSPIN}, 0")
wait_flag("L_gp", F_GO, NLD, sleep=2)
ts(7)
def q_loads(): e(f"global_load_dwordx4 {vr(24,4)}, v10, {sWS} sc1 nt")
def h_loads():
    e(f"global_load_dwordx4 {vr(28,4)}, v11, {sWS} sc1 nt")
    e(f"global_load_dwordx4 {vr(32,4)}, v12, {sWS} sc1 nt")
def q_fail():
    c("still missing after a few rounds: assume a peer on another XCD; everyone here republishes write-through")
    e(f"s_cmp_lg_u32 {sSPIN}, {RQ}")
    e("s_cbranch_scc1 L_qf1")
    e("v_mov_b32 v36, 0x10000")
    e(f"ds_or_b32 v{vFL}, v36 offset:{F_S1}")
    lab("L_qf1")
    e(f"ds_read_b32 v1, v{vFL} offset:{F_S1}")
    e("s_waitcnt lgkmcnt(0)")
    e(f"v_readfirstlane_b32 {sT0}, v1")
    e(f"s_cmp_lt_u32 {sT0}, 0x10000")
    e("s_cbranch_scc1 L_qf2")
    republish("L_qf2")
c("a few staggered looks in flight; the first complete one wins")
for k in range(QTRY - 1):
    e(f"global_load_dwordx4 {vr(128+4*k,4)}, v10, {sWS} sc1 nt")
    e(f"s_sleep {QGAP}")
e(f"global_load_dwordx4 {vr(128+4*(QTRY-1),4)}, v10, {sWS} sc1 nt")
h_loads()
for k in range(QTRY):
    e(f"s_waitcnt vmcnt({QTRY - 1 - k + 2})")
    for n in range(4): e(f"v_xor_b32 v{24+n}, {sXT[n]}, v{128+4*k+n}")
    e("v_or3_b32 v36, v24, v25, v26")
    e("v_or_b32 v36, v36, v27")
    e("v_and_b32 v36, 0xff, v36")
    e("v_cmp_ne_u32 vcc, 0, v36")
    if PROFILE: e(f"v_writelane_b32 v{vTS}, {k+1}, 23")
    e("s_cbranch_vccz L_q_got")
poll("L_q", q_loads, [24,25,26,27], 36, SLP_Q, issued=False, tags=sXT, onfail=q_fail)
if PROFILE: e(f"v_writelane_b32 v{vTS}, 10, 23")
h_loads()
lab("L_q_got")
e("v_or3_b32 v36, v24, v25, v26")
e("v_or_b32 v36, v36, v27")
e("v_and_b32 v36, 0x100, v36")
e("v_cmp_ne_u32 vcc, 0, v36")
for k in range(4): e(f"v_and_b32 v{24+k}, v60, v{24+k}")
e("s_cmp_lg_u64 vcc, 0")
e(f"s_cselect_b32 {sT1}, 0x10001, 1")
e(f"v_mov_b32 v36, {sT1}")
fold4(24)
e("v_cvt_pk_bf16_f32 v24, v24, v24")
e("ds_write_b16 v13, v24")
e("s_mov_b64 exec, 1")
e(f"ds_add_u32 v{vFL}, v36 offset:{F_S1}")
e("s_mov_b64 exec, -1")
ts(8)
if ABL == 4: e("s_branch L_fin")
KF, QF = 40, 72
wait_flag("L_kl", F_KL, NLD, sleep=2)
for t in range(2):
    for s in range(4):
        e(f"ds_read_b128 {vr(KF+16*t+4*s,4)}, v{20+s} offset:{t*4096}")
lab("L_s1")
e(f"ds_read_b32 v1, v{vFL} offset:{F_S1}")
e("s_waitcnt lgkmcnt(0)")
e(f"v_readfirstlane_b32 {sT1}, v1")
e(f"s_lshr_b32 {sFAST}, {sT1}, 16")
e("s_cbranch_scc0 L_s1b")
republish("L_s1b")
e(f"s_and_b32 {sT0}, {sT1}, 0xffff")
e(f"s_cmp_lt_u32 {sT0}, 8")
e("s_cbranch_scc1 L_s1")
ts(9)
for s in range(4): e(f"ds_read_b128 {vr(QF+4*s,4)}, v17 offset:{s*64}")
for s in range(4):
    e(f"s_waitcnt lgkmcnt({3-s})")
    for t in range(2):
        e(f"v_mfma_f32_16x16x32_bf16 {vr(88+4*t,4)}, {vr(KF+16*t+4*s,4)}, {vr(QF+4*s,4)}, " + ("0" if s == 0 else vr(88+4*t,4)))
e("s_nop 7")
for k in range(1, 4):
    e(f"v_mov_b32_dpp v88, v{88+k} quad_perm:[0,1,2,3] row_mask:0xf bank_mask:{1<<k:#x}")
    e(f"v_mov_b32_dpp v92, v{92+k} quad_perm:[0,1,2,3] row_mask:0xf bank_mask:{1<<k:#x}")
    if k < 3: e("s_nop 0")
c("scores: bf16(bf16(qk) * scale)")
round2(88, 92, 89)
e("v_mul_f32 v88, 0x3db504f3, v88")
e("v_mul_f32 v92, 0x3db504f3, v92")
round2(88, 92, 89)
e("v_max_f32 v90, v88, v92")
e("s_nop 1")
e("v_max_f32_dpp v90, v90, v90 row_ror:4 row_mask:0xf bank_mask:0xf")
e("s_nop 1")
e("v_max_f32_dpp v90, v90, v90 row_ror:8 row_mask:0xf bank_mask:0xf")
e("v_mov_b32 v91, v90")
e("s_nop 1")
e("v_permlane16_swap_b32 v90, v91")
e("v_max_f32 v90, v90, v91")
e("v_mov_b32 v91, v90")
e("s_nop 1")
e("v_permlane32_swap_b32 v90, v91")
e("v_max_f32 v90, v90, v91")
e("s_mov_b64 exec, 15")
e("ds_write_b32 v19, v90")
arrive(F_S2)
ts(10)
wait_flag("L_s2", F_S2, 8)
e(f"ds_read_b128 {vr(96,4)}, v18")
e(f"ds_read_b128 {vr(100,4)}, v18 offset:16")
e("s_waitcnt lgkmcnt(0)")
e("v_max3_f32 v96, v96, v97, v98")
e("v_max3_f32 v100, v100, v101, v102")
e("v_max3_f32 v96, v96, v99, v103")
e("v_max_f32 v96, v96, v100")
e("v_sub_f32 v88, v88, v96")
e("v_sub_f32 v92, v92, v96")
e(f"v_mul_f32 v88, {LOG2E}, v88")
e(f"v_mul_f32 v92, {LOG2E}, v92")
e("v_exp_f32 v88, v88")
e("v_exp_f32 v92, v92")
e("s_nop 0")
e("v_cvt_pk_bf16_f32 v88, v88, v92")
e("ds_write_b16 v119, v88")
e("ds_write_b16_d16_hi v119, v88 offset:32")
arrive(F_S3)
ts(11)
PF, VF, OD = 40, 72, 104
c("addresses: V transpose read, o publish, o gather, stats, o LDS write, fragments, final publish / gather")
e("v_and_b32 v1, 3, v0")
e("v_bfe_u32 v2, v0, 2, 2")
e(f"v_lshl_add_u32 v2, v{vG}, 3, v2")
e("v_bfe_u32 v10, v0, 2, 3")
e(f"v_xor_b32 v10, {sW}, v10")
e("v_lshlrev_b32 v10, 5, v10")
e("v_lshl_add_u32 v10, v2, 8, v10")
e("v_lshl_add_u32 v10, v1, 3, v10")
e(f"v_add_u32 v10, {V_L}, v10")
e(f"s_lshl_b32 {sT0}, s2, 7")
e(f"s_add_u32 {sT0}, {sT0}, {SG_G}")
e(f"v_lshl_add_u32 v14, v1, 4, {sT0}")
wait_flag("L_s3", F_S3, 8)
ts(12)
for t in range(8):
    e(f"ds_read_b128 {vr(PF+4*t,4)}, v{vFP} offset:{t*64}")
e(f"s_cmp_lg_u32 {sW}, 7")
e("s_cbranch_scc1 L_nostats")
c("wave 7: row sums of P by MFMA with ones, publish (m, l)")
for k in range(4): e(f"v_mov_b32 v{20+k}, 0x3f803f80")
e("s_waitcnt lgkmcnt(0)")
for t in range(8):
    e(f"v_mfma_f32_16x16x32_bf16 {vr(108,4)}, {vr(20,4)}, {vr(PF+4*t,4)}, " + ("0" if t == 0 else vr(108,4)))
e("v_mov_b32 v24, v96")
e("v_mov_b32 v26, v96")
e("s_mov_b64 exec, 15")
e("s_nop 4")
e("v_mov_b32 v25, v108")
e("v_mov_b32 v27, v108")
tag4(24)
pub("L_ps", 14, 24, 1)
e("s_mov_b64 exec, -1")
lab("L_nostats")
c("h: finish the gather, silu")
e(f"s_cmp_eq_u32 {sKVH}, 7")
e("s_cbranch_scc1 L_hdone")
poll("L_h", h_loads, list(range(28, 36)), 36, SLP_Q)
for k in range(4): e(f"v_add_f32 v{28+k}, v{28+k}, v{32+k}")
fold4(28)
round1(28)
e("v_mul_f32 v29, 0xbfb8aa3b, v28")
e("v_exp_f32 v29, v29")
e("s_nop 0")
e("v_add_f32 v29, 1.0, v29")
e("v_rcp_f32 v29, v29")
e("s_nop 0")
e("v_mul_f32 v28, v28, v29")
e("v_cvt_pk_bf16_f32 v28, v28, v28")
e("ds_write_b16 v16, v28")
lab("L_hdone")
e("v_and_b32 v1, 3, v0")
e(f"s_lshl_b32 {sT0}, {sKVH}, 16")
e(f"s_lshl_b32 {sT1}, {sR}, 9")
e(f"s_add_u32 {sT0}, {sT0}, {sT1}")
e(f"s_lshl_b32 {sT1}, {sW}, 6")
e(f"s_add_u32 {sT0}, {sT0}, {sT1}")
e(f"s_add_u32 {sT0}, {sT0}, {OG_G}")
e("v_lshlrev_b32 v2, 14, v1")
e(f"v_lshl_add_u32 v2, v{vG}, 4, v2")
e(f"v_add_u32 v11, {sT0}, v2")
e(f"s_lshl_b32 {sT0}, {sHG}, 14")
e(f"s_lshl_b32 {sT2}, {sW}, 11")
e(f"s_add_u32 {sT0}, {sT0}, {sT2}")
e(f"s_add_u32 {sT0}, {sT0}, {OG_G}")
e(f"v_lshl_add_u32 v12, v0, 4, {sT0}")
e("v_and_b32 v2, 31, v0")
e("v_lshrrev_b32 v15, 5, v0")
e("v_lshlrev_b32 v15, 2, v15")
e("v_lshl_add_u32 v15, v2, 3, v15")
e(f"s_mul_i32 {sT0}, {sW}, {OL_S}")
e(f"v_add_u32 v15, {sT0}, v15")
e("v_and_b32 v1, 7, v0")
e(f"v_mul_u32_u24 v16, {HL_S}, v1")
e(f"v_lshl_add_u32 v16, v{vG}, 4, v16")
e(f"v_add_u32 v16, {HL_L}, v16")
e(f"v_mul_u32_u24 v17, {OL_S}, v1")
e(f"v_lshl_add_u32 v17, v{vG}, 4, v17")
e(f"s_lshl_b32 {sT0}, {sHI}, 2")
e(f"s_add_u32 {sT0}, {sT0}, {sCT}")
e(f"s_lshl_b32 {sT0}, {sT0}, 14")
e(f"s_lshl_b32 {sT1}, {sHG}, 6")
e(f"s_add_u32 {sT0}, {sT0}, {sT1}")
e(f"s_add_u32 {sT0}, {sT0}, {FG_G}")
e("v_lshlrev_b32 v18, 11, v1")
e(f"v_lshl_add_u32 v18, v{vG}, 4, v18")
e(f"v_add_u32 v18, {sT0}, v18")
e(f"s_lshl_b32 {sT0}, {sHG}, 14")
e(f"s_lshl_b32 {sT1}, {sHI}, 11")
e(f"s_add_u32 {sT0}, {sT0}, {sT1}")
e(f"s_add_u32 {sT0}, {sT0}, {FG_G}")
e(f"v_lshl_add_u32 v19, v0, 4, {sT0}")
e(f"s_lshl_b32 {sT5}, {sW}, 12")
e(f"s_lshl_b32 {sT1}, {sKVH}, 7")
e(f"s_add_u32 {sT5}, {sT5}, {sT1}")
e(f"s_lshl_b32 {sT1}, {sLO}, 4")
e(f"s_add_u32 {sT5}, {sT5}, {sT1}")
e(f"s_add_u32 {sT5}, {sT5}, {SG_G}")
e("v_and_b32 v1, 3, v0")
e(f"v_lshl_add_u32 v13, v1, 10, {sT5}")
def pv(tiles, first):
    for n, t in enumerate(tiles):
        e(f"ds_read_b64_tr_b16 {vr(VF+4*n,2)}, v10 offset:{t*8192}")
        e(f"ds_read_b64_tr_b16 {vr(VF+4*n+2,2)}, v10 offset:{t*8192+1024}")
    for n, t in enumerate(tiles):
        e(f"s_waitcnt lgkmcnt({2*(len(tiles)-1-n)})")
        e(f"v_mfma_f32_16x16x32_bf16 {vr(OD,4)}, {vr(VF+4*n,4)}, {vr(PF+4*t,4)}, " + ("0" if first and n == 0 else vr(OD,4)))
if ABL == 5: e("s_branch L_fin")
wait_flag("L_v5", F_V5, NLD, sleep=2)
ts(13)
e(f"global_load_dwordx4 {vr(20,4)}, v13, {sWS} sc1 nt")
pv([0,1,2,3,4,5], True)
def s_loads(): e(f"global_load_dwordx4 {vr(20,4)}, v13, {sWS} sc1 nt")
def o_loads():
    e(f"global_load_dwordx4 {vr(24,4)}, v12, {sWS} sc1 nt")
    e(f"global_load_dwordx4 {vr(28,4)}, v12, {sWS} offset:1024 sc1 nt")
wait_flag("L_v6", F_V6, NLD, sleep=1)
pv([6], False)
e("s_barrier")
ts(14)
pv([7], False)
e("s_mov_b32 exec_lo, 0x000f000f")
e("s_mov_b32 exec_hi, 0x000f000f")
e("s_nop 5")
tag4(OD)
pub("L_po", 11, OD, 1)
e("s_mov_b64 exec, -1")
ts(15)
poll("L_st", s_loads, [20,21,22,23], 36, SLP_O, dup=[(20,22),(21,23)], first=1)
c("alpha[c] = exp(m_c - m) / sum_c(l_c exp(m_c - m)), c = l&3")
e("v_max_f32_dpp v22, v20, v20 quad_perm:[1,0,3,2] row_mask:0xf bank_mask:0xf")
e("s_nop 1")
e("v_max_f32_dpp v22, v22, v22 quad_perm:[2,3,0,1] row_mask:0xf bank_mask:0xf")
e("v_sub_f32 v20, v20, v22")
e(f"v_mul_f32 v20, {LOG2E}, v20")
e("v_exp_f32 v20, v20")
e("s_nop 0")
e("v_mul_f32 v21, v20, v21")
e("s_nop 1")
e("v_add_f32_dpp v21, v21, v21 quad_perm:[1,0,3,2] row_mask:0xf bank_mask:0xf")
e("s_nop 1")
e("v_add_f32_dpp v21, v21, v21 quad_perm:[2,3,0,1] row_mask:0xf bank_mask:0xf")
e("v_rcp_f32 v21, v21")
e("s_nop 0")
e("v_mul_f32 v20, v20, v21")
e("s_nop 1")
e("v_mov_b32_dpp v22, v20 quad_perm:[0,0,0,0] row_mask:0x3 bank_mask:0xf")
e("v_mov_b32_dpp v23, v20 quad_perm:[2,2,2,2] row_mask:0x3 bank_mask:0xf")
e("s_nop 0")
e("v_mov_b32_dpp v22, v20 quad_perm:[1,1,1,1] row_mask:0xc bank_mask:0xf")
e("v_mov_b32_dpp v23, v20 quad_perm:[3,3,3,3] row_mask:0xc bank_mask:0xf")
o_loads()
ts(16)
e("s_barrier")
ts(17)
WF, W2F, HF, FD = 40, 56, 64, 108
e(f"s_cmp_ge_u32 {sW}, 4")
e("s_cbranch_scc1 L_nowf")
for s in range(2):
    e(f"ds_read_b64_tr_b16 {vr(W2F+4*s,2)}, v{vWT} offset:{WB_O + s*4096}")
    e(f"ds_read_b64_tr_b16 {vr(W2F+4*s+2,2)}, v{vWT} offset:{WB_O + s*4096 + 512}")
e(f"ds_read_b128 {vr(HF,4)}, v16")
e(f"ds_read_b128 {vr(HF+4,4)}, v16 offset:64")
for s in range(4):
    e(f"ds_read_b64_tr_b16 {vr(WF+4*s,2)}, v{vWT} offset:{WA_O + s*4096}")
    e(f"ds_read_b64_tr_b16 {vr(WF+4*s+2,2)}, v{vWT} offset:{WA_O + s*4096 + 512}")
for k in range(4): e(f"v_mov_b32 v{FD+k}, 0")
lab("L_nowf")
poll("L_o", o_loads, list(range(24, 32)), 36, SLP_O)
ts(18)
for k in range(4): e(f"v_mul_f32 v{24+k}, v22, v{24+k}")
for k in range(4): e(f"v_fmac_f32 v{24+k}, v23, v{28+k}")
e("s_nop 1")
e("v_permlane32_swap_b32 v24, v26")
e("v_permlane32_swap_b32 v25, v27")
e("v_add_f32 v24, v24, v26")
e("v_add_f32 v25, v25, v27")
e("v_cvt_pk_bf16_f32 v24, v24, v25")
e("ds_write_b32 v15, v24")
e("s_waitcnt lgkmcnt(0)")
e("s_barrier")
ts(19)
e(f"s_cmp_ge_u32 {sW}, 4")
e("s_cbranch_scc1 L_fin")
OF = 72
for s in range(4): e(f"ds_read_b128 {vr(OF+4*s,4)}, v17 offset:{s*64}")
e(f"s_cmp_eq_u32 {sKVH}, 7")
e("s_cbranch_scc1 L_noffn")
e(f"v_mfma_f32_16x16x32_bf16 {vr(FD,4)}, {vr(W2F,4)}, {vr(HF,4)}, 0")
e(f"v_mfma_f32_16x16x32_bf16 {vr(FD,4)}, {vr(W2F+4,4)}, {vr(HF+4,4)}, {vr(FD,4)}")
lab("L_noffn")
for s in range(4):
    e(f"s_waitcnt lgkmcnt({3-s})")
    e(f"v_mfma_f32_16x16x32_bf16 {vr(FD,4)}, {vr(WF+4*s,4)}, {vr(OF+4*s,4)}, {vr(FD,4)}")
e("s_mov_b32 exec_lo, 0x00ff00ff")
e("s_mov_b32 exec_hi, 0x00ff00ff")
e("s_nop 5")
tag4(FD)
e(f"global_store_dwordx4 v18, {vr(FD,4)}, {sWS} sc1")
e("s_mov_b64 exec, -1")
ts(20)
e(f"s_cmp_lg_u32 {sW}, 0")
e("s_cbranch_scc1 L_fin")
c("reducer (b = hi, column tile = hg)")
e(f"v_and_b32 v1, 31, v{vRO}")
e(f"v_add_u32 v1, {XR_L}, v1")
e("ds_read_u16 v2, v1")
def f_loads():
    e(f"global_load_dwordx4 {vr(24,4)}, v19, {sWS} sc1")
    e(f"global_load_dwordx4 {vr(28,4)}, v19, {sWS} offset:1024 sc1")
c("look only once this wave's own partial has been acknowledged: earlier looks just slow the writers down")
e("s_waitcnt vmcnt(0) lgkmcnt(0)")
e("v_lshlrev_b32 v2, 16, v2")
if FDLY: e(f"s_sleep {FDLY}")
if FPIPE <= 1:
    poll("L_f", f_loads, list(range(24, 32)), 36, SLP_F, issued=False)
else:
    c("several rounds in flight, so that a slow round never delays the next look")
    def fset(k): return 40 + 8*k
    def f_issue(k):
        e(f"global_load_dwordx4 {vr(fset(k),4)}, v19, {sWS} sc1")
        e(f"global_load_dwordx4 {vr(fset(k)+4,4)}, v19, {sWS} offset:1024 sc1")
    for k in range(FPIPE - 1):
        f_issue(k)
        e(f"s_sleep {SLP_F + 1}")
    lab("L_f_loop")
    for k in range(FPIPE):
        f_issue((k + FPIPE - 1) % FPIPE)
        e(f"s_waitcnt vmcnt({2*(FPIPE-1)})")
        for n in range(8): e(f"v_xor_b32 v{24+n}, {sTAG}, v{fset(k)+n}")
        e("v_or3_b32 v36, v24, v25, v26")
        e("v_or3_b32 v37, v27, v28, v29")
        e("v_or3_b32 v36, v36, v30, v31")
        e("v_or_b32 v36, v36, v37")
        e("v_and_b32 v36, 0xff, v36")
        e("v_cmp_ne_u32 vcc, 0, v36")
        e("s_cbranch_vccz L_f_done")
        if SLP_F: e(f"s_sleep {SLP_F}")
    e(f"s_add_u32 {sSPIN}, {sSPIN}, 1")
    e(f"s_cmp_le_u32 {sSPIN}, {SPIN_MAX}")
    e("s_cbranch_scc1 L_f_loop")
    lab("L_f_done")
ts(21)
for k in range(4): e(f"v_add_f32 v{24+k}, v{24+k}, v{28+k}")
fold4(24)
e("s_nop 1")
e("v_add_f32_dpp v24, v24, v24 row_ror:4 row_mask:0xf bank_mask:0xf")
e("s_nop 1")
e("v_add_f32_dpp v24, v24, v24 row_ror:8 row_mask:0xf bank_mask:0xf")
e("v_add_f32 v24, v24, v2")
e("v_cvt_pk_bf16_f32 v24, v24, v24")
e("s_mov_b32 exec_lo, 0x000f000f")
e("s_mov_b32 exec_hi, 0x000f000f")
e(f"global_store_short v{vRO}, v24, {sOUT}")
e("s_cmp_lg_u32 s2, 0")
e("s_cbranch_scc1 L_fin0")
c("workgroup 0 has (transitively) heard from every workgroup: advance the epoch")
e("s_mov_b64 exec, 1")
e(f"v_mov_b32 v1, {EP_G}")
e(f"v_mov_b32 v2, {sEP}")
e(f"global_store_dword v1, v2, {sWS}")
if AMP:
    e("s_memrealtime s[40:41]")
    e("s_waitcnt lgkmcnt(0)")
    e("s_sub_u32 s42, s40, s48")
    e(f"s_mul_i32 s42, s42, {AMP}")
    lab("L_amp")
    e("s_memrealtime s[40:41]")
    e("s_waitcnt lgkmcnt(0)")
    e("s_sub_u32 s43, s40, s48")
    e("s_cmp_lt_u32 s43, s42")
    e("s_cbranch_scc1 L_amp")
lab("L_fin0")
e("s_mov_b64 exec, -1")
ts(22)
dbg_out()
lab("L_fin")
ts_flush()
lab("L_end")
e("s_endpgm")
L.append(f""".section .rodata,"a"
.p2align 6
.amdhsa_kernel {NAME}_kernel
  .amdhsa_next_free_vgpr 144
  .amdhsa_next_free_sgpr 96
  .amdhsa_accum_offset 144
  .amdhsa_group_segment_fixed_size 0
  .amdhsa_kernarg_size 88
  .amdhsa_user_sgpr_count 2
  .amdhsa_user_sgpr_kernarg_segment_ptr 1
  .amdhsa_system_sgpr_workgroup_id_x 1
  .amdhsa_float_denorm_mode_32 3
.end_amdhsa_kernel""")
open(OUT, "w").write("\n".join(L) + "\n")
```
